```python
import torch

def _softmax(x, axis=-1):
    return torch.softmax(x, dim=axis)
def _gelu(x):
    return torch.nn.functional.gelu(x, approximate="tanh")
def _silu(x):
    return torch.nn.functional.silu(x)
def _sigmoid(x):
    return torch.sigmoid(x)
def _layernorm(x, axis=-1, eps=1e-5):
    m = x.mean(dim=axis, keepdim=True)
    v = x.var(dim=axis, keepdim=True, unbiased=False)
    return (x - m) / torch.sqrt(v + eps)
def _scatter_add(tgt, idx, src, axis=0):
    return tgt.clone().index_add_(axis, idx, src)
def _segment_sum(src, seg, n):
    out = torch.zeros((n,) + src.shape[1:], dtype=src.dtype)
    return out.index_add_(0, seg, src)
def _pad(x, pw):
    flat = tuple(v for pair in reversed(pw) for v in pair)
    return torch.nn.functional.pad(x, flat)

kernel_name = 'parallel_sum__grouped_kv_mqa__dense_activation_silu__prompt'

def setup_inputs():

    _w = (lambda a: (lambda t: t.to(torch.bfloat16) if t.is_floating_point() else t)(torch.as_tensor(a)))
    def _A_setup():
        B, S, D, H = 1, 2048, 640, 32
        Dh = D // H
        return {
            "x": _w((lambda *s: torch.randn(*s, dtype=torch.bfloat16) * 0.05)(B, S, D)),
            "wq": _w((lambda *s: torch.randn(*s, dtype=torch.bfloat16) * 0.05)(D, H * Dh)),
            "wk": _w((lambda *s: torch.randn(*s, dtype=torch.bfloat16) * 0.05)(D, Dh)),
            "wv": _w((lambda *s: torch.randn(*s, dtype=torch.bfloat16) * 0.05)(D, Dh)),
            "wo": _w((lambda *s: torch.randn(*s, dtype=torch.bfloat16) * 0.05)(H * Dh, D)),
        }
    _A_in = _A_setup()

    def _B_setup():
        B, S, D, F = 1, 2048, 640, 1728
        return {
            "x": _w((lambda *s: torch.randn(*s, dtype=torch.bfloat16) * 0.05)(B, S, D)),
            "w1": _w((lambda *s: torch.randn(*s, dtype=torch.bfloat16) * 0.8)(D, F) * (D ** -0.5)),
            "w2": _w((lambda *s: torch.randn(*s, dtype=torch.bfloat16) * 0.8)(F, D) * (F ** -0.5)),
        }
    _B_in = _B_setup()

    return {
        "A_x": _A_in["x"],
        "A_wq": _A_in["wq"],
        "A_wk": _A_in["wk"],
        "A_wv": _A_in["wv"],
        "A_wo": _A_in["wo"],
        "B_x": _B_in["x"],
        "B_w1": _B_in["w1"],
        "B_w2": _B_in["w2"],
    }

def reference(A_x, A_wq, A_wk, A_wv, A_wo, B_x, B_w1, B_w2):
    def _A_ref(x, wq, wk, wv, wo):
        B, S, D = x.shape
        H = 32
        Dh = D // H
        q = (lambda x, *d: x.permute(*d))((x @ wq).reshape(B, S, H, Dh), 0, 2, 1, 3)
        k = x @ wk
        v = x @ wv
        scores = torch.einsum("bhqd,bkd->bhqk", q, k) * (Dh ** -0.5)
        p = _softmax(scores, axis=-1)
        o = torch.einsum("bhqk,bkd->bhqd", p, v)
        return (lambda x, *d: x.permute(*d))(o, 0, 2, 1, 3).reshape(B, S, H * Dh) @ wo

    def _B_ref(x, w1, w2):
        h = torch.einsum("bsd,df->bsf", x, w1)
        h = _silu(h)
        out = torch.einsum("bsf,fd->bsd", h, w2)
        return out

    x = A_x
    xn = _layernorm(x, axis=-1)
    return x + _A_ref(xn, A_wq, A_wk, A_wv, A_wo) + _B_ref(xn, B_w1, B_w2)
```

```python
import re

REG_RE = re.compile(r'(?<![\w.])([vas])(?:\[(\d+):(\d+)\]|(\d+))(?![\w])')

def regs_in(op):
    out=set()
    for m in REG_RE.finditer(op):
        k=m.group(1)
        if m.group(2) is not None:
            for i in range(int(m.group(2)), int(m.group(3))+1): out.add((k,i))
        else:
            out.add((k,int(m.group(4))))
    if re.search(r'\bvcc\b', op): out.add(('s','vcc'))
    if re.search(r'\bm0\b', op): out.add(('s','m0'))
    if re.search(r'\bexec\b', op): out.add(('s','exec'))
    return out

TRANS=('v_exp_f32','v_log_f32','v_rcp_f32','v_rsq_f32','v_sqrt_f32','v_sin_f32','v_cos_f32','v_rcp_iflag_f32','v_exp_f16','v_rcp_f16')

class Ins:
    __slots__=('text','op','ops','kind','wr','rd','passes','srcA','srcB','srcC','is_label','is_branch','target','nstates','storedata','dpp','comment','mods')
    def __init__(self,text):
        self.text=text
        t=text.split(';')[0].strip()
        self.is_label=t.endswith(':') and ' ' not in t
        self.is_branch=False; self.target=None
        self.wr=set(); self.rd=set(); self.kind=None; self.passes=0
        self.srcA=self.srcB=self.srcC=set(); self.nstates=1; self.storedata=set(); self.dpp=False
        self.op=''; self.ops=[]; self.mods=''
        if self.is_label or not t or t.startswith('.'):
            self.kind='meta'; self.nstates=0; return
        parts=t.split(None,1)
        self.op=parts[0]
        rest=parts[1] if len(parts)>1 else ''
        ops=[];depth=0;cur=''
        for ch in rest:
            if ch=='[': depth+=1
            if ch==']': depth-=1
            if ch==',' and depth==0: ops.append(cur.strip()); cur=''
            else: cur+=ch
        if cur.strip(): ops.append(cur.strip())
        self.ops=ops
        op=self.op
        def R(i):
            if i>=len(ops): return set()
            return regs_in(ops[i].split(' ')[0] if not ops[i].startswith('abs') else ops[i])
        allrd=lambda a: set().union(*[R(i) for i in range(a,len(ops))]) if len(ops)>a else set()
        if op.startswith('v_mfma'):
            self.kind='mfma'
            self.wr=R(0); self.srcA=R(1); self.srcB=R(2); self.srcC=R(3)
            self.rd=self.srcA|self.srcB|self.srcC
            if '32x32' in op: self.passes=8
            elif '16x16' in op: self.passes=4
            else: raise Exception('mfma passes? '+op)
        elif op.startswith('v_'):
            self.kind='valu'
            self.dpp = ('_dpp' in op) or ('quad_perm' in rest) or ('row_' in rest)
            if op.startswith('v_cmp'):
                self.wr=R(0); self.rd=allrd(1)
                if op.startswith('v_cmpx'): self.wr|={('s','exec')}
            elif op.startswith('v_permlane') and 'swap' in op:
                self.wr=R(0)|R(1); self.rd=R(0)|R(1); self.kind='valu'
            elif op.startswith('v_add_co') or op.startswith('v_sub_co') or op.startswith('v_addc_co') or op.startswith('v_subb_co'):
                self.wr=R(0)|R(1); self.rd=allrd(2)
            elif op.startswith('v_fmac') or op.startswith('v_dot2c') or op.startswith('v_pk_fmac'):
                self.wr=R(0); self.rd=allrd(0)
            else:
                self.wr=R(0); self.rd=allrd(1)
                if op.startswith('v_cndmask') and len(ops)==3: self.rd|={('s','vcc')}
                if 'UNUSED_PRESERVE' in rest: self.rd|=R(0)
        elif op.startswith('ds_'):
            self.kind='ds'
            if op.startswith('ds_read') or op.startswith('ds_bpermute') or op.startswith('ds_swizzle') or '_rtn' in op:
                self.wr=R(0); self.rd=allrd(1)
            else:
                self.rd=allrd(0)
        elif op.startswith('buffer_') or op.startswith('global_'):
            self.kind='vmem'
            islds = re.search(r'\blds\b',rest) is not None
            if op.startswith('buffer_load'):
                if islds: self.rd=allrd(0)|{('s','m0')}
                else: self.wr=R(0); self.rd=allrd(1)
            elif op.startswith('buffer_store'):
                self.rd=allrd(0)
                if 'x4' in op or 'x3' in op: self.storedata=R(0)
            elif op.startswith('global_load'):
                self.wr=R(0); self.rd=allrd(1)
            elif op.startswith('global_store'):
                self.rd=allrd(0)
                if 'x4' in op or 'x3' in op: self.storedata=R(1)
            elif op.startswith('global_atomic') or op.startswith('buffer_atomic'):
                self.rd=allrd(0)
            elif op.startswith('buffer_inv') or op.startswith('buffer_wbl2'):
                pass
            else: raise Exception('vmem? '+op)
        elif op.startswith('s_'):
            self.kind='salu'
            if op=='s_nop':
                self.nstates=int(ops[0],0)+1; self.kind='nop'
            elif op.startswith('s_cbranch') or op=='s_branch':
                self.is_branch=True; self.target=ops[0]
                if 'vcc' in op: self.rd={('s','vcc')}
                if 'exec' in op: self.rd={('s','exec')}
            elif op in('s_waitcnt','s_barrier','s_endpgm','s_sleep','s_setprio'):
                pass
            elif op.startswith('s_cmp') or op.startswith('s_bitcmp'):
                self.rd=allrd(0)
            elif op.startswith('s_load') or op.startswith('s_memtime') or op.startswith('s_memrealtime') or op.startswith('s_getreg') or op.startswith('s_getpc'):
                self.wr=R(0); self.rd=allrd(1)
            elif 'saveexec' in op:
                self.wr=R(0)|{('s','exec')}; self.rd=allrd(1)|{('s','exec')}
            else:
                self.wr=R(0); self.rd=allrd(1)
        else:
            raise Exception('unknown instruction: '+text)

def vregs(s): return {r for r in s if r[0] in 'va'}
def sregs(s): return {r for r in s if r[0]=='s'}

def required(p, c):
    need=0
    if p.kind=='valu':
        pw_v=vregs(p.wr); pw_s=sregs(p.wr)
        if pw_v:
            if c.kind=='mfma' and pw_v & c.rd: need=max(need,2)
            if c.kind=='valu':
                if c.op.startswith(('v_readlane','v_readfirstlane')) and pw_v & c.rd: need=max(need,1)
                if c.dpp and pw_v & c.rd: need=max(need,2)
                if c.op.startswith('v_permlane') and pw_v & c.rd: need=max(need,2)
                if p.op.startswith(TRANS) and pw_v & c.rd: need=max(need,1)
                if p.op.startswith('v_dot') and (pw_v & (c.rd|c.wr)):
                    same = (c.op==p.op and len(c.ops)>=3 and (vregs(p.wr) & regs_in(c.ops[-1] if not c.op.startswith('v_dot2c') else c.ops[0])) and not (pw_v & (regs_in(c.ops[1])|regs_in(c.ops[2]))))
                    if not same: need=max(need,3)
                if 'sdwa' in p.op and pw_v & c.rd: need=max(need,1)
            if p.op.startswith('v_dot') and c.kind in('ds','vmem','mfma') and pw_v & c.rd: need=max(need,3)
            if p.op.startswith(TRANS) and c.kind in('ds','vmem') and pw_v & c.rd: need=max(need,1)
        if pw_s:
            if c.kind=='valu' and pw_s & c.rd:
                need=max(need,2)
                if c.op.startswith(('v_readlane','v_writelane')): need=max(need,4)
            if c.kind=='vmem' and pw_s & c.rd: need=max(need,5)
            if c.kind=='mfma' and (('s','exec') in pw_s): need=max(need,4)
            if c.kind=='salu' and pw_s & c.rd: need=max(need,2)
            if c.kind=='ds' and pw_s & c.rd: need=max(need,5)
    if p.kind=='mfma':
        n=p.passes
        raw={4:8,8:12}[n]; ovl={4:6,8:10}[n]; war={4:3,8:7}[n]
        if c.kind=='mfma':
            if p.wr & c.srcC:
                if not (p.wr==c.srcC and c.passes==n): need=max(need,ovl)
            if p.wr & (c.srcA|c.srcB): need=max(need,raw)
            if (p.wr & c.wr) and not (p.wr & c.srcC): need=max(need,ovl)
        elif c.kind=='valu':
            if p.wr & (c.rd|c.wr): need=max(need,raw)
            if vregs(p.srcC) & c.wr: need=max(need,war)
        elif c.kind in('ds','vmem'):
            if p.wr & (c.rd|c.wr): need=max(need,raw)
    if p.kind=='vmem' and p.storedata:
        if c.kind=='valu' and p.storedata & c.wr: need=max(need,2)
        elif c.kind in('ds','vmem','mfma') and p.storedata & c.wr: need=max(need,1)
    if p.kind=='salu' and ('s','m0') in p.wr:
        if c.kind=='vmem' and ('s','m0') in c.rd: need=max(need,1)
    return need

MAXW=13
def fix_hazards(lines, verbose=False):
    ins=[Ins(l) for l in lines]
    labels={}
    for i,x in enumerate(ins):
        if x.is_label: labels[x.text.strip()[:-1]]=i
    preds=[[] for _ in ins]
    for i,x in enumerate(ins):
        if i+1<len(ins) and not (x.op in('s_branch','s_endpgm')): preds[i+1].append(i)
        if x.is_branch:
            if x.target not in labels: raise Exception('missing label '+x.target)
            preds[labels[x.target]].append(i)
    extra=[0]*len(ins)
    for rnd in range(3):
        changed=False
        for j,c in enumerate(ins):
            if c.kind in('meta','nop'): continue
            if not (c.rd or c.wr): continue
            worst=0
            stack=[(p,extra[j]) for p in preds[j]]
            seen={}
            while stack:
                i,d=stack.pop()
                if d>=MAXW: continue
                if i in seen and seen[i]<=d: continue
                seen[i]=d
                p=ins[i]
                if p.kind not in('meta','nop'):
                    r=required(p,c)
                    if r>d: worst=max(worst,r-d)
                nd=d+p.nstates+extra[i]
                for q in preds[i]: stack.append((q,nd))
            if worst>0:
                extra[j]+=worst; changed=True
                if verbose: print('nop',worst,'before',j,c.text)
        if not changed: break
    out=[]; total=0
    for j,x in enumerate(ins):
        n=extra[j]; total+=n
        while n>0:
            k=min(n,16); out.append(f'  s_nop {k-1}'); n-=k
        out.append(x.text)
    return out,total

class Asm:
    def __init__(self):
        self.L=[]; self.nlab=0
    def e(self,s):
        for l in s.split('\n'):
            l=l.rstrip()
            if l.strip()=='' : continue
            if l.strip().endswith(':') and ' ' not in l.strip(): self.L.append(l.strip())
            else: self.L.append('  '+l.strip())
    def label(self,n): self.L.append(n+':')
    def newlabel(self,p='L'):
        self.nlab+=1; return f'{p}_{self.nlab}'
    def c(self,s): self.L.append('  ; '+s)

class Cnt:
    def __init__(self,asm,name,maxv):
        self.a=asm; self.name=name; self.q=[]; self.maxv=maxv
    def issue(self,tag): self.q.append(tag)
    def wait(self,tag):
        if tag not in self.q: return
        i=len(self.q)-1-self.q[::-1].index(tag)
        n=len(self.q)-1-i
        assert n<=self.maxv, (self.name,n)
        self.a.e(f's_waitcnt {self.name}({n})')
        self.q=self.q[i+1:]
    def waitall(self):
        self.a.e(f's_waitcnt {self.name}(0)'); self.q=[]
    def reset(self): self.q=[]
```

```python
import sys, math, struct
from asmlib import Asm, Cnt, fix_hazards

KNAME="parallel_sum__grouped_kv_mqa__dense_activation_silu__prompt_kernel"
def f2u(x): return struct.unpack('<I',struct.pack('<f',x))[0]
LOG2E=1.4426950408889634; LN2=0.6931471805599453
XN=0; XNS=1296
RED=0
PSTR=336; PSZ=64*PSTR
QF=86016
RING_A=102400; RING_A_SZ=8192
RING_F=135168; RING_F_SZ=6144
CNT=159744
C_Q=0; C_H=4; C_NLO=8; C_NHI=12; C_KV=16; C_KMAX=20; C_HR=24; C_OW=28; C_OS=32; C_OR=36; C_X=40; C_F2=44; C_MX=48
LDS_TOTAL=163840
F2RING_SZ=18432
KF=0; VF=0x20000; KVFLAG=0x40000; HFLAG=0x48000; OFLAG=0x50000; DBG=0x60000
OF=0x100000; HF=0x400000; WS_SIZE=0xB00000
OOB=0x80000000
sT=4; sJ=5; sW=6
P_X=8; P_WQ=10; P_WK=12; P_WV=14; P_WO=16; P_W1=20; P_W2=22; P_OUT=24; P_DBG=26; P_WS=28
SRD_X=32; SRD_S=36; SRD_W2=40; SRD_WO=44; SRD_WS=48; SRD_OUT=52
sOFF=56; sSTEP=57; sOFF2=58; sRING=59; sNLO=60; sNHI=61
sA=62; sB=63; sC=64; sD=65; sE=66; sF=67; sG=68; sH=69
sONES=70; sSPIN=71; sM=72
sHM=86; sK=76; sV=77; sLOOP=78; sCF1=79; sCF2=80; sTT=81; sP=82; sI=83; sQ=84; sR=85
def srd(n): return f"s[{n}:{n+3}]"
def vr(a,n=1): return f"v{a}" if n==1 else f"v[{a}:{a+n-1}]"
def ar(a,n=1): return f"a{a}" if n==1 else f"a[{a}:{a+n-1}]"

STOP=None
SPIN_MAX=400000

class G:
    def __init__(self, stop=None, opts=None):
        self.a=Asm(); self.stop=stop; self.o=opts or {}
    def e(self,s): self.a.e(s)
    def mk_srd(self,dst,ptr,size):
        self.e(f"""s_mov_b32 s{dst}, s{ptr}
                   s_mov_b32 s{dst+1}, s{ptr+1}
                   s_mov_b32 s{dst+2}, {size}
                   s_mov_b32 s{dst+3}, 0x20000""")
    def lds_spin(self, off, val, vtmp, vcnt):
        L=self.a.newlabel('Lspin'); D=self.a.newlabel('Lspd')
        self.e(f"s_mov_b32 s{sSPIN}, {SPIN_MAX}")
        self.a.label(L)
        self.e(f"""ds_read_b32 v{vtmp}, v{vcnt} offset:{off}
                   s_waitcnt lgkmcnt(0)
                   v_readfirstlane_b32 s{sA}, v{vtmp}
                   s_cmp_ge_u32 s{sA}, {val}
                   s_cbranch_scc1 {D}
                   s_sleep 1
                   s_sub_u32 s{sSPIN}, s{sSPIN}, 1
                   s_cmp_lg_u32 s{sSPIN}, 0
                   s_cbranch_scc1 {L}""")
        self.a.label(D)
    def lds_inc(self, off, vtmp, vcnt, rtn=False):
        self.e(f"""s_mov_b64 exec, 1
                   v_mov_b32 v{vtmp}, 1""")
        if rtn:
            self.e(f"""ds_add_rtn_u32 v{vtmp}, v{vcnt}, v{vtmp} offset:{off}
                       s_waitcnt lgkmcnt(0)
                       v_readfirstlane_b32 s{sA}, v{vtmp}""")
        else:
            self.e(f"ds_add_u32 v{vcnt}, v{vtmp} offset:{off}")
        self.e("s_mov_b64 exec, -1")
    def get_nonce(self, vtmp, vcnt):
        self.lds_spin(C_NLO,1,vtmp,vcnt)
        self.e(f"""ds_read_b64 v[{vtmp}:{vtmp+1}], v{vcnt} offset:{C_NLO}
                   s_waitcnt lgkmcnt(0)
                   v_readfirstlane_b32 s{sNLO}, v{vtmp}
                   v_readfirstlane_b32 s{sNHI}, v{vtmp+1}""")
    def flag_store(self, soff_sreg, vtmp, payload=None):
        self.e(f"""s_mov_b64 exec, 1
                   v_mov_b32 v{vtmp}, s{sNLO}
                   v_mov_b32 v{vtmp+1}, s{sNHI}
                   v_mov_b32 v{vtmp+2}, {('s%d'%payload) if payload is not None else 0}
                   v_mov_b32 v{vtmp+3}, 0
                   v_mov_b32 v{vtmp+4}, 0
                   buffer_store_dwordx4 v[{vtmp}:{vtmp+3}], v{vtmp+4}, {srd(SRD_WS)}, s{soff_sreg} offen sc1
                   s_mov_b64 exec, -1""")
    def flag_poll(self, voff, vtmp, nl, soff_sreg):
        L=self.a.newlabel('Lpoll'); D=self.a.newlabel('Lpd')
        mask=(1<<nl)-1
        self.e(f"""s_mov_b32 s{sSPIN}, {SPIN_MAX}
                   s_mov_b32 s{sM}, {mask & 0xffffffff}
                   s_mov_b32 s{sM+1}, {mask>>32}
                   s_mov_b64 exec, s[{sM}:{sM+1}]""")
        self.a.label(L)
        self.e(f"""buffer_load_dwordx4 v[{vtmp}:{vtmp+3}], v{voff}, {srd(SRD_WS)}, s{soff_sreg} offen sc1
                   s_waitcnt vmcnt(0)
                   v_cmp_ne_u32 vcc, s{sNLO}, v{vtmp}
                   v_cmp_ne_u32 s[{sM+2}:{sM+3}], s{sNHI}, v{vtmp+1}
                   s_or_b64 vcc, vcc, s[{sM+2}:{sM+3}]
                   s_cmp_eq_u64 vcc, 0
                   s_cbranch_scc1 {D}
                   s_sleep 1
                   s_sub_u32 s{sSPIN}, s{sSPIN}, 1
                   s_cmp_lg_u32 s{sSPIN}, 0
                   s_cbranch_scc1 {L}""")
        self.a.label(D)
        self.e("s_mov_b64 exec, -1")
    def lds_set(self, off, src, vtmp, vcnt):
        self.e(f"""v_mov_b32 v{vtmp}, {src}
                   s_mov_b64 exec, 1
                   ds_write_b32 v{vcnt}, v{vtmp} offset:{off}
                   s_mov_b64 exec, -1""")

    def prologue(self):
        e=self.e
        e(f"""s_cmp_ge_u32 s2, 256
              s_cbranch_scc1 L_exit
              s_load_dwordx16 s[8:23], s[0:1], 0
              s_load_dwordx4 s[24:27], s[0:1], 64
              s_load_dwordx2 s[28:29], s[0:1], 80
              s_and_b32 s3, s2, 7
              s_lshl_b32 s3, s3, 2
              s_lshr_b32 s{sT}, s2, 6
              s_add_u32 s{sT}, s{sT}, s3
              s_lshr_b32 s{sJ}, s2, 3
              s_and_b32 s{sJ}, s{sJ}, 7
              v_lshrrev_b32 v1, 6, v0
              v_lshrrev_b32 v2, 3, v0
              v_and_b32 v3, 7, v0
              v_readfirstlane_b32 s{sW}, v1
              s_lshl_b32 s3, s{sT}, 6
              v_add_u32 v4, s3, v2
              v_mul_u32_u24 v4, 1280, v4
              v_lshl_add_u32 v4, v3, 4, v4
              s_waitcnt lgkmcnt(0)""")
        self.mk_srd(SRD_X,P_X,2621440)
        for i in range(10):
            e(f"buffer_load_dwordx4 v[{16+4*i}:{19+4*i}], v4, {srd(SRD_X)}, 0 offen offset:{128*i}")
        e(f"""v_mul_u32_u24 v5, {XNS}, v2
              v_lshl_add_u32 v5, v3, 4, v5
              v_and_b32 v6, 63, v0
              v_mov_b32 v1, {CNT}
              s_mov_b32 s{sONES}, 0x3f803f80""")
        self.mk_srd(SRD_WS,P_WS,WS_SIZE)
        L=self.a.newlabel('Lw0')
        e(f"""s_cmp_lg_u32 s{sW}, 0
              s_cbranch_scc1 {L}
              v_mov_b32 v8, 0
              v_lshl_add_u32 v9, v6, 2, v1
              v_cmp_gt_u32 vcc, 16, v6
              s_and_saveexec_b64 s[{sM}:{sM+1}], vcc
              ds_write_b32 v9, v8
              s_mov_b64 exec, -1
              s_cmp_lg_u32 s2, 0
              s_cbranch_scc1 {L}
              s_memrealtime s[{sM}:{sM+1}]
              s_waitcnt lgkmcnt(0)
              s_or_b32 s{sM}, s{sM}, 1
              s_mov_b64 exec, 1
              v_mov_b32 v8, s{sM}
              v_mov_b32 v9, s{sM+1}
              v_mov_b32 v10, 0
              global_store_dwordx2 v10, v[8:9], s[{P_DBG}:{P_DBG+1}] sc1
              s_mov_b64 exec, -1""")
        self.a.label(L)
        self.nvm_extra=1

    def layernorm(self, vm_after):
        e=self.e
        e(f"s_waitcnt vmcnt({0 if self.o.get('lnwait0') else vm_after})")
        e("v_mov_b32 v8, 0\nv_mov_b32 v9, 0\nv_mov_b32 v10, 0\nv_mov_b32 v11, 0")
        for r in range(40):
            e(f"v_dot2_f32_bf16 v{8+(r&1)}, v{16+r}, s{sONES}, v{8+(r&1)}")
            e(f"v_dot2_f32_bf16 v{10+(r&1)}, v{16+r}, v{16+r}, v{10+(r&1)}")
        e("v_add_f32 v8, v8, v9\nv_add_f32 v10, v10, v11")
        for m in ("quad_perm:[1,0,3,2]","quad_perm:[2,3,0,1]","row_half_mirror"):
            e(f"v_add_f32_dpp v8, v8, v8 {m} row_mask:0xf bank_mask:0xf")
            e(f"v_add_f32_dpp v10, v10, v10 {m} row_mask:0xf bank_mask:0xf")
        e(f"""v_mul_f32 v8, {hex(f2u(1/640))}, v8
              v_mul_f32 v10, {hex(f2u(1/640))}, v10
              v_fma_f32 v10, -v8, v8, v10
              v_max_f32 v10, 0, v10
              v_add_f32 v10, {hex(f2u(1e-5))}, v10
              v_rsq_f32 v10, v10
              v_mul_f32 v10, {hex(f2u(LOG2E))}, v10
              v_mul_f32 v12, v8, v10
              v_sub_f32 v12, 0, v12
              v_mov_b32 v11, v10
              v_mov_b32 v13, v12""")
        for i in range(10):
            for k in range(4):
                r=16+4*i+k
                t=56+ 2*((4*i+k)%4)
                e(f"""v_lshlrev_b32 v{t}, 16, v{r}
                      v_and_b32 v{t+1}, 0xffff0000, v{r}
                      v_pk_fma_f32 v[{t}:{t+1}], v[{t}:{t+1}], v[10:11], v[12:13]
                      v_cvt_pk_bf16_f32 v{r}, v{t}, v{t+1}""")
            e(f"ds_write_b128 v5, v[{16+4*i}:{19+4*i}] offset:{128*i}")
        e("s_waitcnt lgkmcnt(0)\ns_barrier")

    def dma(self, srd_n, voff, soff_s, lds_base_s, lds_imm, mid=None):
        self.e(f"s_add_u32 m0, s{lds_base_s}, {lds_imm}")
        if mid: self.e(mid)
        self.e(f"buffer_load_dwordx4 v{voff}, {srd(srd_n)}, s{soff_s} offen lds")
    def stream_voff(self, vdst, vlane, s_rowstride, s_colbyte, s_npieces, vt):
        self.e(f"""v_lshrrev_b32 v{vt}, 2, v{vlane}
                   v_mul_lo_u32 v{vdst}, s{s_rowstride}, v{vt}
                   v_and_b32 v{vt}, 3, v{vlane}
                   v_lshl_add_u32 v{vdst}, v{vt}, 4, v{vdst}
                   v_add_u32 v{vdst}, s{s_colbyte}, v{vdst}
                   v_cmp_gt_u32 vcc, s{s_npieces}, v{vt}
                   v_mov_b32 v{vt}, {hex(OOB)}
                   v_cndmask_b32 v{vdst}, v{vt}, v{vdst}, vcc""")
    def tr_addr(self, vdst, vlane, hstride_rows, s_base, vt):
        self.e(f"""v_lshrrev_b32 v{vdst}, 5, v{vlane}
                   v_mul_u32_u24 v{vdst}, {hstride_rows*64}, v{vdst}
                   v_bfe_u32 v{vt}, v{vlane}, 2, 2
                   v_lshl_add_u32 v{vdst}, v{vt}, 6, v{vdst}
                   v_bfe_u32 v{vt}, v{vlane}, 4, 1
                   v_lshl_add_u32 v{vdst}, v{vt}, 5, v{vdst}
                   v_and_b32 v{vt}, 3, v{vlane}
                   v_lshl_add_u32 v{vdst}, v{vt}, 3, v{vdst}
                   v_add_u32 v{vdst}, s{s_base}, v{vdst}""")
    def l2_prefetch_rows(self, srd_n, s_rowstride, s_colbyte, vlane, vt, vdummy, nins=3):
        self.e(f"""s_and_b32 s{sA}, s{sT}, 3
                   s_mul_i32 s{sA}, s{sA}, 160
                   v_add_u32 v{vt}, s{sA}, v{vlane}
                   v_mul_lo_u32 v{vt}, s{s_rowstride}, v{vt}
                   v_add_u32 v{vt}, s{s_colbyte}, v{vt}
                   s_lshl_b32 s{sA}, s{s_rowstride}, 6
                   s_mov_b32 s{sB}, 0""")
        for i in range(nins):
            self.e(f"buffer_load_dword v{vdummy}, v{vt}, {srd(srd_n)}, s{sB} offen")
            if i+1<nins: self.e(f"s_add_u32 s{sB}, s{sB}, s{sA}")
        return nins

    def silu_store(self, D, T, voff, soff_s):
        e=self.e
        for half in range(2):
            b=D+8*half
            for i in range(8): e(f"v_exp_f32 v{T+i}, -v{b+i}")
            for i in range(0,8,2): e(f"v_pk_add_f32 v[{T+i}:{T+i+1}], v[{T+i}:{T+i+1}], 1.0 op_sel_hi:[1,0]")
            for i in range(8): e(f"v_rcp_f32 v{T+i}, v{T+i}")
            for i in range(0,8,2): e(f"v_pk_mul_f32 v[{b+i}:{b+i+1}], v[{b+i}:{b+i+1}], v[{T+i}:{T+i+1}]")
            for i in range(4): e(f"v_cvt_pk_bf16_f32 v{b+i}, v{b+2*i}, v{b+2*i+1}")
            e(f"buffer_store_dwordx4 v[{b}:{b+3}], v{voff}, {srd(SRD_WS)}, s{soff_s} offen offset:{1024*half} sc1")

    def publish_h(self, nprod_s, vt, vcnt):
        e=self.e
        e("s_waitcnt vmcnt(0)")
        self.lds_inc(C_H, vt, vcnt, rtn=True)
        L=self.a.newlabel('Lnh')
        e(f"""s_add_u32 s{sA}, s{sA}, 1
              s_cmp_lg_u32 s{sA}, s{nprod_s}
              s_cbranch_scc1 {L}""")
        self.get_nonce(vt, vcnt)
        e(f"""s_lshl_b32 s{sB}, s{sT}, 3
              s_add_u32 s{sB}, s{sB}, s{sJ}
              s_lshl_b32 s{sB}, s{sB}, 7
              s_add_u32 s{sB}, s{sB}, {HFLAG}""")
        self.flag_store(sB, vt)
        self.a.label(L)

    def role_a(self):
        e=self.e; a=self.a
        vL=6; vCNT=1
        vS=7
        vTR=14
        vB0=15
        e(f"""; ---- role A: stream set-up ----
              s_mov_b32 s{sC}, 1280
              s_mul_i32 s{sD}, s{sJ}, 160
              s_lshl_b32 s{sE}, s{sW}, 6
              s_add_u32 s{sD}, s{sD}, s{sE}
              s_cmp_eq_u32 s{sW}, 2
              s_cselect_b32 s{sE}, 2, 4
              s_mov_b32 s{SRD_S}, s{P_WQ}
              s_mov_b32 s{SRD_S+1}, s{P_WQ+1}
              s_mov_b32 s{SRD_S+2}, 819200
              s_mov_b32 s{SRD_S+3}, 0x20000
              s_cmp_eq_u32 s{sW}, 3
              s_cbranch_scc0 L_a_setup_done
              s_cmp_ge_u32 s{sJ}, 6
              s_cbranch_scc1 L_a_setup_kv
              s_mov_b32 s{sC}, 3456
              s_mul_i32 s{sD}, s{sJ}, 7
              s_add_u32 s{sD}, s{sD}, 6
              s_mov_b32 s{sCF1}, s{sD}
              s_lshl_b32 s{sD}, s{sD}, 6
              s_mov_b32 s{sE}, 4
              s_mov_b32 s{SRD_S}, s{P_W1}
              s_mov_b32 s{SRD_S+1}, s{P_W1+1}
              s_mov_b32 s{SRD_S+2}, 2211840
              s_branch L_a_setup_done
            L_a_setup_kv:
              s_mov_b32 s{sC}, 40
              s_mov_b32 s{sD}, 0
              s_mov_b32 s{sE}, 3
              s_cmp_eq_u32 s{sJ}, 6
              s_cselect_b32 s{SRD_S}, s{P_WK}, s{P_WV}
              s_cselect_b32 s{SRD_S+1}, s{P_WK+1}, s{P_WV+1}
              s_mov_b32 s{SRD_S+2}, 25600
            L_a_setup_done:
              s_lshl_b32 s{sSTEP}, s{sC}, 4
              s_sub_u32 s{sOFF}, 0, s{sSTEP}
              s_lshl_b32 s{sRING}, s{sW}, 13
              s_add_u32 s{sRING}, s{sRING}, {RING_A}""")
        self.stream_voff(vS, vL, sC, sD, sE, 8)
        NS=8
        adv=f"s_add_u32 s{sOFF}, s{sOFF}, s{sSTEP}"
        for s in range(NS):
            self.dma(SRD_S, vS, sOFF, sRING, 1024*s, adv)
        npf=self.l2_prefetch_rows(SRD_S, sC, sD, vL, 8, 127)
        self.tr_addr(vTR, vL, 8, sRING, 8)
        e(f"""v_and_b32 v8, 31, v{vL}
              v_mul_u32_u24 v{vB0}, {XNS}, v8
              v_lshrrev_b32 v8, 5, v{vL}
              v_lshl_add_u32 v{vB0}, v8, 4, v{vB0}""")
        self.layernorm(NS+npf)
        e(f"""s_cmp_eq_u32 s{sW}, 3
              s_cselect_b32 s{sA}, 1, 0
              s_cmp_eq_u32 s{sJ}, 7
              s_cselect_b32 s{sB}, s{sA}, 0
              s_cmp_eq_u32 s{sB}, 1
              s_cbranch_scc1 L_a_s2_swapped""")
        D=64
        def s2(swap):
            vm=Cnt(a,'vmcnt',63); lg=Cnt(a,'lgkmcnt',15)
            for s in range(NS): vm.issue(('d',s))
            for i in range(npf): vm.issue(('pf',i))
            def reads(s):
                A=16+4*(s&1); B=24+8*(s&1)
                slot=(s%NS)*1024
                e(f"ds_read_b64_tr_b16 v[{A}:{A+1}], v{vTR} offset:{slot}"); lg.issue(('r',s))
                e(f"ds_read_b64_tr_b16 v[{A+2}:{A+3}], v{vTR} offset:{slot+256}"); lg.issue(('r',s))
                for tt in range(2):
                    e(f"ds_read_b128 v[{B+4*tt}:{B+4*tt+3}], v{vB0} offset:{tt*32*XNS+32*s}"); lg.issue(('r',s))
            vm.wait(('d',0)); reads(0)
            for s in range(40):
                if s+1<40:
                    vm.wait(('d',s+1)); reads(s+1)
                lg.wait(('r',s))
                A=16+4*(s&1); B=24+8*(s&1)
                for tt in range(2):
                    acc=vr(D+16*tt,16); c=acc if s>0 else '0'
                    if not swap: e(f"v_mfma_f32_32x32x16_bf16 {acc}, {vr(A,4)}, {vr(B+4*tt,4)}, {c}")
                    else:        e(f"v_mfma_f32_32x32x16_bf16 {acc}, {vr(B+4*tt,4)}, {vr(A,4)}, {c}")
                if s+NS<40:
                    self.dma(SRD_S, vS, sOFF, sRING, 1024*(s%NS), adv); vm.issue(('d',s+NS))
            e("s_waitcnt vmcnt(0)")
            self.lds_inc(C_X, 8, vCNT)
        s2(False)
        e(f"""s_cmp_eq_u32 s{sW}, 3
              s_cbranch_scc0 L_a_ep_q
              s_cmp_eq_u32 s{sJ}, 6
              s_cbranch_scc1 L_a_ep_k
              s_branch L_a_ep_h""")
        a.label('L_a_s2_swapped')
        s2(True)
        e(f"""; ---- V epilogue ----
              v_and_b32 v8, 31, v{vL}
              v_cmp_gt_u32 vcc, 20, v8
              v_cndmask_b32 v10, 0, -1, vcc
              v_cmp_eq_u32 vcc, 20, v8
              v_mov_b32 v9, s{sONES}
              v_cndmask_b32 v11, 0, v9, vcc
              v_lshlrev_b32 v12, 4, v{vL}""")
        for tt in range(2):
            e(f"""s_lshl_b32 s{sB}, s{sT}, 1
                  s_add_u32 s{sB}, s{sB}, {tt}
                  s_lshl_b32 s{sB}, s{sB}, 11
                  s_add_u32 s{sB}, s{sB}, {VF}""")
            for fa in range(2):
                b=D+16*tt+8*fa
                for i in range(4): e(f"v_cvt_pk_bf16_f32 v{b+i}, v{b+2*i}, v{b+2*i+1}")
                for i in range(4): e(f"v_and_or_b32 v{b+i}, v{b+i}, v10, v11")
                e(f"buffer_store_dwordx4 v[{b}:{b+3}], v12, {srd(SRD_WS)}, s{sB} offen offset:{1024*fa} sc1")
        e("s_waitcnt vmcnt(0)")
        self.get_nonce(8, vCNT)
        e(f"""s_add_u32 s{sB}, s{sT}, 32
              s_lshl_b32 s{sB}, s{sB}, 7
              s_add_u32 s{sB}, s{sB}, {KVFLAG}""")
        self.flag_store(sB, 8)
        e("s_branch L_a_ep_done")
        a.label('L_a_ep_k')
        e(f"""; ---- K epilogue ----
              v_lshlrev_b32 v12, 4, v{vL}
              v_lshlrev_b32 v13, 3, v{vL}
              v_cmp_gt_u32 s[{sM}:{sM+1}], 32, v{vL}
              v_mov_b32 v20, 0""")
        for tt in range(2):
            b=D+16*tt
            e(f"""s_lshl_b32 s{sB}, s{sT}, 1
                  s_add_u32 s{sB}, s{sB}, {tt}
                  s_mul_i32 s{sB}, s{sB}, 1536
                  s_add_u32 s{sB}, s{sB}, {KF}""")
            for i in range(6): e(f"v_cvt_pk_bf16_f32 v{b+i}, v{b+2*i}, v{b+2*i+1}")
            e(f"""v_cndmask_b32 v{b+4}, 0, v{b+4}, s[{sM}:{sM+1}]
                  v_cndmask_b32 v{b+5}, 0, v{b+5}, s[{sM}:{sM+1}]
                  v_mov_b32 v21, 0""")
            for i in range(6): e(f"v_dot2_f32_bf16 v21, v{b+i}, v{b+i}, v21")
            e(f"""v_mov_b32 v22, s{sONES}
                  v_mov_b32 v23, 0x3f80
                  v_cndmask_b32 v{b+4}, v22, v{b+4}, s[{sM}:{sM+1}]
                  v_cndmask_b32 v{b+5}, v23, v{b+5}, s[{sM}:{sM+1}]
                  buffer_store_dwordx4 v[{b}:{b+3}], v12, {srd(SRD_WS)}, s{sB} offen sc1
                  buffer_store_dwordx2 v[{b+4}:{b+5}], v13, {srd(SRD_WS)}, s{sB} offen offset:1024 sc1
                  v_mov_b32 v22, v21
                  v_permlane32_swap_b32 v22, v21
                  v_add_f32 v21, v21, v22
                  v_max_f32 v20, v20, v21""")
        for m in ("quad_perm:[1,0,3,2]","quad_perm:[2,3,0,1]","row_half_mirror","row_mirror"):
            e(f"v_max_f32_dpp v20, v20, v20 {m} row_mask:0xf bank_mask:0xf")
        e(f"""v_mov_b32 v21, v20
              v_permlane16_swap_b32 v21, v20
              v_max_f32 v20, v20, v21
              v_readfirstlane_b32 s{sC}, v20
              s_waitcnt vmcnt(0)""")
        self.get_nonce(8, vCNT)
        e(f"""s_lshl_b32 s{sB}, s{sT}, 7
              s_add_u32 s{sB}, s{sB}, {KVFLAG}""")
        self.flag_store(sB, 8, payload=sC)
        e("s_branch L_a_ep_done")
        a.label('L_a_ep_h')
        e(f"v_lshlrev_b32 v12, 4, v{vL}")
        for tt in range(2):
            e(f"""s_lshl_b32 s{sB}, s{sT}, 1
                  s_add_u32 s{sB}, s{sB}, {tt}
                  s_mul_i32 s{sB}, s{sB}, 108
                  s_lshl_b32 s{sC}, s{sCF1}, 1
                  s_add_u32 s{sB}, s{sB}, s{sC}
                  s_lshl_b32 s{sB}, s{sB}, 10
                  s_add_u32 s{sB}, s{sB}, {HF}""")
            self.silu_store(D+16*tt, 16, 12, sB)
        e(f"s_mov_b32 s{sD}, 5")
        self.publish_h(sD, 8, vCNT)
        e("s_branch L_a_ep_done")
        a.label('L_a_ep_q')
        c1=LN2/math.sqrt(20.0)
        e(f"""v_mov_b32 v10, {hex(f2u(c1))}
              v_mov_b32 v11, v10
              v_and_b32 v8, 31, v{vL}
              v_lshlrev_b32 v12, 4, v8
              v_add_u32 v12, {QF}, v12
              v_lshrrev_b32 v13, 5, v{vL}
              s_cmp_eq_u32 s{sW}, 1
              s_cbranch_scc1 L_a_ep_q1
              s_cmp_eq_u32 s{sW}, 2
              s_cbranch_scc1 L_a_ep_q2""")
        def qconst(g):
            head,dq=divmod(g,5)
            return head*4096 + ((dq&1)*512+(dq>>1)*8 if dq<4 else 1024)
        for c in range(3):
            if c>0: a.label(f'L_a_ep_q{c}')
            for rq in range(4 if c<2 else 2):
                C0=qconst(8*c+2*rq); C1=qconst(8*c+2*rq+1)
                e(f"""s_mov_b32 s{sA}, {C1-C0}
                      v_mad_i32_i24 v9, v13, s{sA}, v12""")
                for tt in range(2):
                    b=D+16*tt+4*rq
                    e(f"""v_pk_mul_f32 v[{b}:{b+1}], v[{b}:{b+1}], v[10:11]
                          v_pk_mul_f32 v[{b+2}:{b+3}], v[{b+2}:{b+3}], v[10:11]
                          v_cvt_pk_bf16_f32 v{b}, v{b}, v{b+1}
                          v_cvt_pk_bf16_f32 v{b+1}, v{b+2}, v{b+3}
                          ds_write_b64 v9, v[{b}:{b+1}] offset:{C0+2048*tt}""")
            e("s_waitcnt lgkmcnt(0)")
            self.lds_inc(C_Q, 8, vCNT)
            if c<2: e("s_branch L_a_ep_done")
        a.label('L_a_ep_done')

    def attention(self):
        e=self.e; a=self.a
        vL=6; vCNT=1
        Q=12; S0=60; S1=76; P=92; KV=(100,114)
        vK16=2; vK8=3; vV16=4
        def Q1(ct): return vr(Q+6*ct,4)
        def Q2(ct): return vr(Q+6*ct+4,2)
        self.lds_spin(C_Q,3,8,vCNT)
        e(f"""v_and_b32 v8, 31, v{vL}
              v_lshlrev_b32 v9, 4, v{vL}
              v_add_u32 v9, {QF}, v9
              v_lshlrev_b32 v10, 4, v8
              v_add_u32 v10, {QF+1024}, v10""")
        for ct in range(8):
            e(f"ds_read_b128 {Q1(ct)}, v9 offset:{2048*ct}")
            e(f"ds_read_b64 {Q2(ct)}, v10 offset:{2048*ct}")
            if ct%4==3: e("s_waitcnt lgkmcnt(0)")
        e(f"v_cmp_gt_u32 s[{sHM}:{sHM+1}], 32, v{vL}")
        for i in range(128): e(f"v_accvgpr_write_b32 a{i}, 0")
        for ct in range(8):
            q2=Q+6*ct+4
            e(f"""v_cndmask_b32 v{q2}, 0, v{q2}, s[{sHM}:{sHM+1}]
                  v_cndmask_b32 v{q2+1}, 0, v{q2+1}, s[{sHM}:{sHM+1}]""")
        for ct in range(8):
            n=S0+ct
            e(f"v_mov_b32 v{n}, 0")
            for i in range(6): e(f"v_dot2_f32_bf16 v{n}, v{Q+6*ct+i}, v{Q+6*ct+i}, v{n}")
        for ct in range(8):
            n=S0+ct; t=S1+ct
            e(f"""v_mov_b32 v{t}, v{n}
                  v_permlane32_swap_b32 v{t}, v{n}
                  v_add_f32 v{n}, v{n}, v{t}""")
        e(f"""v_lshlrev_b32 v{vK16}, 4, v{vL}
              v_lshlrev_b32 v{vK8}, 3, v{vL}
              v_and_b32 v8, 31, v{vL}
              v_cmp_gt_u32 vcc, 21, v8
              v_mov_b32 v9, {hex(OOB)}
              v_cndmask_b32 v{vV16}, v9, v{vK16}, vcc""")
        L=a.newlabel('Lkvw')
        e(f"""s_cmp_lg_u32 s{sW}, 0
              s_cbranch_scc1 {L}""")
        self.get_nonce(8,vCNT)
        e(f"""v_lshlrev_b32 v5, 7, v{vL}
              s_mov_b32 s{sB}, {KVFLAG}""")
        self.flag_poll(5, 8, 64, sB)
        for m in ("quad_perm:[1,0,3,2]","quad_perm:[2,3,0,1]","row_half_mirror","row_mirror"):
            e(f"v_max_f32_dpp v10, v10, v10 {m} row_mask:0xf bank_mask:0xf")
        e(f"""v_mov_b32 v11, v10
              v_permlane16_swap_b32 v11, v10
              v_max_f32 v10, v10, v11
              v_mov_b32 v11, v10
              v_permlane32_swap_b32 v11, v10
              v_max_f32 v10, v10, v11
              s_mov_b64 exec, 1
              ds_write_b32 v{vCNT}, v10 offset:{C_KMAX}
              s_waitcnt lgkmcnt(0)
              v_mov_b32 v10, 1
              ds_write_b32 v{vCNT}, v10 offset:{C_KV}
              s_mov_b64 exec, -1""")
        a.label(L)
        self.lds_spin(C_KV,1,8,vCNT)
        e(f"""s_lshl_b32 s{sA}, s{sW}, 4
              s_mul_i32 s{sK}, s{sA}, 1536
              s_add_u32 s{sK}, s{sK}, {KF}
              s_lshl_b32 s{sV}, s{sA}, 11
              s_add_u32 s{sV}, s{sV}, {VF}
              s_mov_b32 s{sQ}, s{sK}
              s_mov_b32 s{sR}, s{sV}""")
        def kvload(st):
            b=KV[st]
            e(f"""buffer_load_dwordx4 {vr(b,4)}, v{vK16}, {srd(SRD_WS)}, s{sK} offen sc1
                  buffer_load_dwordx2 {vr(b+4,2)}, v{vK8}, {srd(SRD_WS)}, s{sK} offen offset:1024 sc1
                  buffer_load_dwordx4 {vr(b+6,4)}, v{vV16}, {srd(SRD_WS)}, s{sV} offen sc1
                  buffer_load_dwordx4 {vr(b+10,4)}, v{vV16}, {srd(SRD_WS)}, s{sV} offen offset:1024 sc1
                  s_add_u32 s{sK}, s{sK}, 1536
                  s_add_u32 s{sV}, s{sV}, 2048""")
        kvload(0)
        e(f"""ds_read_b32 v8, v{vCNT} offset:{C_KMAX}
              s_waitcnt lgkmcnt(0)
              v_mov_b32 v9, 0""")
        for ct in range(8):
            n=S0+ct
            e(f"""v_mul_f32 v{n}, v{n}, v8
                  v_sqrt_f32 v{n}, v{n}
                  v_mul_f32 v{n}, {hex(f2u(1+2**-6))}, v{n}
                  v_max_f32 v9, v9, v{n}""")
        T=self.o.get('T',48.0)
        e(f"""s_mov_b32 s{sA}, {hex(f2u(T))}
              v_cmp_nge_f32 vcc, s{sA}, v9
              s_cmp_eq_u64 vcc, 0
              s_cbranch_scc1 L_a_shift""")
        for ct in range(8): e(f"v_mov_b32 v{P+ct}, {hex(f2u(-3.0e38))}")
        e(f"s_mov_b32 s{sLOOP}, 16")
        a.label('L_a_mx_loop')
        e("s_waitcnt vmcnt(0)")
        b=KV[0]
        for ct in range(8):
            e(f"""v_mfma_f32_32x32x16_bf16 {vr(S1,16)}, {vr(b,4)}, {Q1(ct)}, 0
                  v_mfma_f32_32x32x8_bf16 {vr(S1,16)}, {vr(b+4,2)}, {Q2(ct)}, {vr(S1,16)}""")
            for i in range(8): e(f"v_max3_f32 v{P+ct}, v{S1+2*i}, v{S1+2*i+1}, v{P+ct}")
        kvload(0)
        e(f"""s_sub_u32 s{sLOOP}, s{sLOOP}, 1
              s_cmp_lg_u32 s{sLOOP}, 0
              s_cbranch_scc1 L_a_mx_loop
              s_waitcnt vmcnt(0)
              s_lshl_b32 s{sA}, s{sW}, 13
              s_add_u32 s{sA}, s{sA}, {RING_A}
              v_lshlrev_b32 v8, 2, v{vL}
              v_add_u32 v9, s{sA}, v8
              v_add_u32 v8, {RING_A}, v8""")
        for ct in range(8):
            n=P+ct
            e(f"""v_mov_b32 v10, v{n}
                  v_permlane32_swap_b32 v10, v{n}
                  v_max_f32 v{n}, v{n}, v10
                  ds_write_b32 v9, v{n} offset:{256*ct}""")
        e("s_waitcnt lgkmcnt(0)")
        self.lds_inc(C_MX,10,vCNT)
        self.lds_spin(C_MX,4,10,vCNT)
        for ct in range(8):
            for w in range(4): e(f"ds_read_b32 v{S1+w}, v8 offset:{8192*w+256*ct}")
            e(f"""s_waitcnt lgkmcnt(0)
                  v_max3_f32 v{S0+ct}, v{S1}, v{S1+1}, v{S1+2}
                  v_max_f32 v{S0+ct}, v{S0+ct}, v{S1+3}""")
        e(f"""s_mov_b32 s{sK}, s{sQ}
              s_mov_b32 s{sV}, s{sR}""")
        kvload(0)
        a.label('L_a_shift')
        for ct in range(8):
            n=S0+ct; q2=Q+6*ct+4
            e(f"""v_sub_f32 v{n}, 0, v{n}
                  v_cvt_pk_bf16_f32 v8, v{n}, v{n}
                  v_lshlrev_b32 v8, 16, v8
                  v_sub_f32 v9, v{n}, v8
                  v_cvt_pk_bf16_f32 v10, v{n}, v9
                  v_and_b32 v8, 0xffff0000, v10
                  v_sub_f32 v9, v9, v8
                  v_cvt_pk_bf16_f32 v11, v9, 0
                  v_cndmask_b32 v{q2}, v10, v{q2}, s[{sHM}:{sHM+1}]
                  v_cndmask_b32 v{q2+1}, v11, v{q2+1}, s[{sHM}:{sHM+1}]""")
        for i in range(4): e(f"v_mov_b32 v{P+4+i}, 0")
        for i in range(4): e(f"v_mov_b32 v{KV[1]+10+i}, 0")
        e("s_waitcnt vmcnt(0)")
        b=KV[0]
        e(f"""v_mfma_f32_32x32x16_bf16 {vr(S0,16)}, {vr(b,4)}, {Q1(0)}, 0
              v_mfma_f32_32x32x8_bf16 {vr(S0,16)}, {vr(b+4,2)}, {Q2(0)}, {vr(S0,16)}
              s_mov_b32 s{sLOOP}, 8
              s_setprio {self.o.get('prioA',1)}
              s_nop 9""")
        e(".p2align 6")
        a.label('L_a_loop')
        for st in range(2):
            cur=KV[st]; oth=KV[st^1]
            for ct in range(8):
                S=S0 if ct%2==0 else S1; N=S1 if ct%2==0 else S0
                nct=(ct+1)%8; kb=cur if ct<7 else oth
                pct=(ct+7)%8; vb=cur if ct>0 else oth
                ex=lambda i: f"v_exp_f32 v{S+i}, v{S+i}"
                cv=lambda i: f"v_cvt_pk_bf16_f32 v{P+i}, v{S+2*i}, v{S+2*i+1}"
                qk1=f"v_mfma_f32_32x32x16_bf16 {vr(N,16)}, {vr(kb,4)}, {Q1(nct)}, 0"
                qk2=f"v_mfma_f32_32x32x8_bf16 {vr(N,16)}, {vr(kb+4,2)}, {Q2(nct)}, {vr(N,16)}"
                pvb=f"v_mfma_f32_32x32x16_bf16 {ar(16*pct,16)}, {vr(vb+10,4)}, {vr(P+4,4)}, {ar(16*pct,16)}"
                pva=f"v_mfma_f32_32x32x16_bf16 {ar(16*ct,16)}, {vr(cur+6,4)}, {vr(P,4)}, {ar(16*ct,16)}"
                if ct==7: e("s_waitcnt vmcnt(0)")
                for x in [qk1,ex(0),ex(1),ex(2),ex(3),cv(0),cv(1),qk2,ex(4),ex(5),ex(6),ex(7),cv(2),cv(3),pvb]: e(x)
                if ct==0: kvload(st^1)
                for x in [ex(8),ex(9),ex(10),ex(11),cv(4),cv(5),pva,ex(12),ex(13),ex(14),ex(15),cv(6),cv(7)]: e(x)
        e(f"""s_sub_u32 s{sLOOP}, s{sLOOP}, 1
              s_cmp_lg_u32 s{sLOOP}, 0
              s_cbranch_scc1 L_a_loop
              v_mfma_f32_32x32x16_bf16 {ar(112,16)}, {vr(KV[1]+10,4)}, {vr(P+4,4)}, {ar(112,16)}
              s_setprio 0
              s_waitcnt vmcnt(0)""")

    def o_reduce(self):
        e=self.e; a=self.a
        vL=6; vCNT=1
        e("; ---- O reduction ----")
        self.lds_spin(C_F2,4,8,vCNT)
        e(f"v_lshlrev_b32 v9, 4, v{vL}")
        for w in range(4):
            if w>0: a.label(f'L_a_ow{w}')
            if w==0:
                e(f"""s_cmp_eq_u32 s{sW}, 1
                      s_cbranch_scc1 L_a_ow1
                      s_cmp_eq_u32 s{sW}, 2
                      s_cbranch_scc1 L_a_ow2
                      s_cmp_eq_u32 s{sW}, 3
                      s_cbranch_scc1 L_a_ow3""")
            for d in range(4):
                if d==w: continue
                slot=w-(1 if w>d else 0)
                base=RED+(d*3+slot)*6144
                e(f"v_add_u32 v10, {base}, v9")
                for tt in range(2):
                    for q in range(3):
                        e(f"ds_write_b128 v10, {ar(16*(2*d+tt)+4*q,4)} offset:{(tt*3+q)*1024}")
            for tt in range(2):
                for i in range(12): e(f"v_accvgpr_read_b32 v{16+12*tt+i}, a{16*(2*w+tt)+i}")
            if w<3: e("s_branch L_a_ow_done")
        a.label('L_a_ow_done')
        e("s_waitcnt lgkmcnt(0)")
        self.lds_inc(C_OW,8,vCNT)
        self.lds_spin(C_OW,4,8,vCNT)
        e(f"""s_mul_i32 s{sA}, s{sW}, {3*6144}
              v_add_u32 v10, s{sA}, v9""")
        if RED: e(f"v_add_u32 v10, {RED}, v10")
        for slot in range(3):
            for k in range(6):
                e(f"ds_read_b128 {vr(40+4*k,4)}, v10 offset:{slot*6144+k*1024}")
            e("s_waitcnt lgkmcnt(0)")
            for i in range(0,24,2):
                e(f"v_pk_add_f32 v[{16+i}:{17+i}], v[{16+i}:{17+i}], v[{40+i}:{41+i}]")
        e(f"""s_lshl_b32 s{sB}, s{sT}, 1
              s_mul_i32 s{sB}, s{sB}, 40
              s_mul_i32 s{sC}, s{sJ}, 5
              s_add_u32 s{sB}, s{sB}, s{sC}
              s_lshl_b32 s{sB}, s{sB}, 10
              s_add_u32 s{sB}, s{sB}, {OF}
              s_lshl_b32 s{sC}, s{sW}, 10
              s_add_u32 s{sC}, s{sC}, s{sB}
              s_add_u32 s{sD}, s{sB}, 4096
              v_and_b32 v10, 31, v{vL}
              v_lshlrev_b32 v10, 4, v10
              s_and_b32 s{sE}, s{sW}, 1
              s_lshl_b32 s{sE}, s{sE}, 9
              s_lshr_b32 s{sF}, s{sW}, 1
              s_lshl_b32 s{sF}, s{sF}, 3
              s_add_u32 s{sE}, s{sE}, s{sF}
              v_add_u32 v10, s{sE}, v10
              v_cmp_gt_u32 vcc, 32, v{vL}
              v_mov_b32 v11, {hex(OOB)}
              v_cndmask_b32 v10, v11, v10, vcc""")
        for tt in range(2):
            b=16+12*tt
            e(f"""v_mov_b32 v12, v{b+8}
                  v_mov_b32 v13, v{b+8}
                  v_permlane32_swap_b32 v12, v13
                  v_rcp_f32 v13, v13
                  v_mov_b32 v12, v13""")
            for i in range(0,12,2): e(f"v_pk_mul_f32 v[{b+i}:{b+i+1}], v[{b+i}:{b+i+1}], v[12:13]")
            for i in range(6): e(f"v_cvt_pk_bf16_f32 v{b+i}, v{b+2*i}, v{b+2*i+1}")
            e(f"""buffer_store_dwordx4 {vr(b,4)}, v9, {srd(SRD_WS)}, s{sC} offen sc1
                  buffer_store_dwordx2 {vr(b+4,2)}, v10, {srd(SRD_WS)}, s{sD} offen sc1""")
            if tt==0: e(f"""s_add_u32 s{sC}, s{sC}, {40*1024}
                            s_add_u32 s{sD}, s{sD}, {40*1024}""")
        e("s_waitcnt vmcnt(0)")
        self.lds_inc(C_OS,8,vCNT,rtn=True)
        L=a.newlabel('Lno')
        e(f"""s_cmp_lg_u32 s{sA}, 3
              s_cbranch_scc1 {L}""")
        self.get_nonce(8,vCNT)
        e(f"""s_lshl_b32 s{sB}, s{sT}, 3
              s_add_u32 s{sB}, s{sB}, s{sJ}
              s_lshl_b32 s{sB}, s{sB}, 7
              s_add_u32 s{sB}, s{sB}, {OFLAG}""")
        self.flag_store(sB, 8)
        a.label(L)

    def role_f(self):
        e=self.e; a=self.a
        vL=6; vCNT=1
        vS1=7; vS2=14; vTR=15; vB0=62; vB1=63
        e(f"""; ---- role F: stream set-up ----
              s_sub_u32 s{sI}, s{sW}, 4
              s_mul_i32 s{sA}, s{sJ}, 7
              s_sub_u32 s{sB}, s{sJ}, 6
              s_mul_i32 s{sB}, s{sB}, 6
              s_add_u32 s{sB}, s{sB}, 42
              s_cmp_ge_u32 s{sJ}, 6
              s_cselect_b32 s{sA}, s{sB}, s{sA}
              s_cselect_b32 s{sP}, 4, 5
              s_add_u32 s{sCF1}, s{sA}, s{sI}
              s_lshr_b32 s{sB}, s{sI}, 1
              s_add_u32 s{sCF2}, s{sA}, s{sB}
              s_add_u32 s{sCF2}, s{sCF2}, 4
              s_and_b32 s{sTT}, s{sI}, 1
              s_mov_b32 s{SRD_S}, s{P_W1}
              s_mov_b32 s{SRD_S+1}, s{P_W1+1}
              s_mov_b32 s{SRD_S+2}, 2211840
              s_mov_b32 s{SRD_S+3}, 0x20000
              s_mov_b32 s{sC}, 3456
              s_mov_b32 s{sE}, 4
              s_mov_b32 s{sSTEP}, 55296
              s_sub_u32 s{sOFF}, 0, s{sSTEP}
              s_mul_i32 s{sRING}, s{sI}, {RING_F_SZ}
              s_add_u32 s{sRING}, s{sRING}, {RING_F}
              s_lshl_b32 s{sD}, s{sCF1}, 6""")
        self.stream_voff(vS1, vL, sC, sD, sE, 8)
        e(f"s_lshl_b32 s{sF}, s{sCF2}, 6")
        self.stream_voff(vS2, vL, sC, sF, sE, 8)
        adv=f"s_add_u32 s{sOFF}, s{sOFF}, s{sSTEP}"
        NS=3
        for s in range(NS):
            self.dma(SRD_S, vS1, sOFF, sRING, 2048*s, adv)
            self.dma(SRD_S, vS2, sOFF, sRING, 2048*s+1024)
        npf=self.l2_prefetch_rows(SRD_S, sC, sD, vL, 8, 127)
        npf+=self.l2_prefetch_rows(SRD_S, sC, sF, vL, 8, 127)
        self.tr_addr(vTR, vL, 8, sRING, 8)
        self.layernorm(2*NS+npf)
        e(f"""v_and_b32 v8, 31, v{vL}
              v_mul_u32_u24 v{vB0}, {XNS}, v8
              v_lshrrev_b32 v8, 5, v{vL}
              v_lshl_add_u32 v{vB0}, v8, 4, v{vB0}
              s_mul_i32 s{sA}, s{sTT}, {32*XNS}
              s_sub_u32 s{sB}, {32*XNS}, s{sA}
              v_add_u32 v{vB1}, s{sB}, v{vB0}
              v_add_u32 v{vB0}, s{sA}, v{vB0}""")
        L=a.newlabel('Lnn'); LP=a.newlabel('Lnp'); LD=a.newlabel('Lnd')
        e(f"""s_cmp_lg_u32 s{sW}, 4
              s_cbranch_scc1 {L}
              s_mov_b32 s{sSPIN}, {SPIN_MAX}
              v_mov_b32 v10, 0""")
        a.label(LP)
        e(f"""global_load_dwordx2 v[8:9], v10, s[{P_DBG}:{P_DBG+1}] sc1
              s_waitcnt vmcnt(0)
              v_readfirstlane_b32 s{sA}, v8
              s_cmp_lg_u32 s{sA}, 0
              s_cbranch_scc1 {LD}
              s_sleep 1
              s_sub_u32 s{sSPIN}, s{sSPIN}, 1
              s_cmp_lg_u32 s{sSPIN}, 0
              s_cbranch_scc1 {LP}""")
        a.label(LD)
        e(f"""s_mov_b64 exec, 1
              ds_write_b32 v{vCNT}, v9 offset:{C_NHI}
              s_waitcnt lgkmcnt(0)
              v_or_b32 v8, 1, v8
              ds_write_b32 v{vCNT}, v8 offset:{C_NLO}
              s_mov_b64 exec, -1""")
        a.label(L)
        D=64
        vm=Cnt(a,'vmcnt',63); lg=Cnt(a,'lgkmcnt',15)
        for s in range(NS): vm.issue(('d',s)); vm.issue(('d',s))
        for i in range(npf): vm.issue(('pf',i))
        def reads(s):
            A=16+8*(s&1); B=32+8*(s&1); slot=(s%NS)*2048
            for st in range(2):
                e(f"ds_read_b64_tr_b16 v[{A+4*st}:{A+4*st+1}], v{vTR} offset:{slot+1024*st}"); lg.issue(('r',s))
                e(f"ds_read_b64_tr_b16 v[{A+4*st+2}:{A+4*st+3}], v{vTR} offset:{slot+1024*st+256}"); lg.issue(('r',s))
            e(f"ds_read_b128 {vr(B,4)}, v{vB0} offset:{32*s}"); lg.issue(('r',s))
            e(f"ds_read_b128 {vr(B+4,4)}, v{vB1} offset:{32*s}"); lg.issue(('r',s))
        vm.wait(('d',0)); reads(0)
        for s in range(40):
            if s+1<40:
                vm.wait(('d',s+1)); reads(s+1)
            lg.wait(('r',s))
            A=16+8*(s&1); B=32+8*(s&1)
            for (acc,Ar,Br) in ((0,A,B),(1,A,B+4),(2,A+4,B)):
                r=vr(D+16*acc,16); c=r if s>0 else '0'
                e(f"v_mfma_f32_32x32x16_bf16 {r}, {vr(Ar,4)}, {vr(Br,4)}, {c}")
            if s+NS<40:
                self.dma(SRD_S, vS1, sOFF, sRING, 2048*(s%NS), adv); vm.issue(('d',s+NS))
                self.dma(SRD_S, vS2, sOFF, sRING, 2048*(s%NS)+1024); vm.issue(('d',s+NS))
        e("s_waitcnt vmcnt(0)")
        self.lds_inc(C_X, 8, vCNT)
        e(f"v_lshlrev_b32 v12, 4, v{vL}")
        for (acc,cf,flip) in ((0,sCF1,0),(1,sCF1,1),(2,sCF2,0)):
            e(f"""s_xor_b32 s{sA}, s{sTT}, {flip}
                  s_lshl_b32 s{sB}, s{sT}, 1
                  s_add_u32 s{sB}, s{sB}, s{sA}
                  s_mul_i32 s{sB}, s{sB}, 108
                  s_lshl_b32 s{sC}, s{cf}, 1
                  s_add_u32 s{sB}, s{sB}, s{sC}
                  s_lshl_b32 s{sB}, s{sB}, 10
                  s_add_u32 s{sB}, s{sB}, {HF}""")
            self.silu_store(D+16*acc, 16, 12, sB)
        self.publish_h(sP, 8, vCNT)
        if self.stop=='s2': return
        self.ffn2()

    def ffn2(self):
        e=self.e; a=self.a
        vL=6; vCNT=1
        vW=[7,14,15]; vTR=13; vB=12
        ND=6
        e("; ---- FFN2 ----")
        self.mk_srd(SRD_W2,P_W2,2211840)
        self.mk_srd(SRD_WO,P_WO,819200)
        e(f"""s_mov_b32 s{sC}, 1280
              s_mul_i32 s{sD}, s{sJ}, 160
              s_mov_b32 s{sE}, 4""")
        self.stream_voff(vW[0], vL, sC, sD, sE, 8)
        e(f"""v_add_u32 v{vW[1]}, 64, v{vW[0]}
              s_add_u32 s{sD}, s{sD}, 128
              s_mov_b32 s{sE}, 2""")
        self.stream_voff(vW[2], vL, sC, sD, sE, 8)
        e(f"""s_mul_i32 s{sRING}, s{sI}, {F2RING_SZ}
              s_add_u32 s{sRING}, s{sRING}, {XN}
              s_mul_i32 s{sOFF}, s{sI}, {27*20480}
              s_sub_u32 s{sOFF}, s{sOFF}, 20480
              v_lshlrev_b32 v{vB}, 4, v{vL}""")
        self.tr_addr(vTR, vL, 4, sRING, 8)
        self.lds_spin(C_X,8,8,vCNT)
        adv=f"s_add_u32 s{sOFF}, s{sOFF}, 20480"
        vm=Cnt(a,'vmcnt',63); lg=Cnt(a,'lgkmcnt',15)
        def dmas(s):
            for c in range(3):
                self.dma(SRD_W2, vW[c], sOFF, sRING, (s%ND)*3072+1024*c, adv if c==0 else None); vm.issue(('d',s))
        for s in range(ND): dmas(s)
        L=a.newlabel('Lhw')
        e(f"""s_cmp_lg_u32 s{sW}, 4
              s_cbranch_scc1 {L}""")
        self.get_nonce(8,vCNT)
        e(f"""v_lshlrev_b32 v5, 7, v{vL}
              s_lshl_b32 s{sB}, s{sT}, 10
              s_add_u32 s{sB}, s{sB}, {HFLAG}""")
        self.flag_poll(5, 8, 8, sB)
        self.lds_set(C_HR, 1, 8, vCNT)
        a.label(L)
        self.lds_spin(C_HR,1,8,vCNT)
        e(f"""s_lshl_b32 s{sK}, s{sT}, 1
              s_mul_i32 s{sK}, s{sK}, 108
              s_mul_i32 s{sA}, s{sI}, 27
              s_add_u32 s{sK}, s{sK}, s{sA}
              s_lshl_b32 s{sK}, s{sK}, 10
              s_add_u32 s{sK}, s{sK}, {HF}
              s_add_u32 s{sV}, s{sK}, {108*1024}""")
        BB=64
        def bload(s):
            b=BB+8*(s%ND)
            e(f"""buffer_load_dwordx4 {vr(b,4)}, v{vB}, {srd(SRD_WS)}, s{sK} offen sc1
                  buffer_load_dwordx4 {vr(b+4,4)}, v{vB}, {srd(SRD_WS)}, s{sV} offen sc1
                  s_add_u32 s{sK}, s{sK}, 1024
                  s_add_u32 s{sV}, s{sV}, 1024""")
            vm.issue(('b',s)); vm.issue(('b',s))
        for s in range(ND): bload(s)
        def reads(s):
            A=16+12*(s&1); slot=(s%ND)*3072
            for c in range(3):
                e(f"ds_read_b64_tr_b16 v[{A+4*c}:{A+4*c+1}], v{vTR} offset:{slot+1024*c}"); lg.issue(('r',s))
                e(f"ds_read_b64_tr_b16 v[{A+4*c+2}:{A+4*c+3}], v{vTR} offset:{slot+1024*c+512}"); lg.issue(('r',s))
        vm.wait(('d',0)); reads(0)
        NST=27
        for s in range(NST):
            if s+1<NST:
                vm.wait(('d',s+1)); reads(s+1)
            lg.wait(('r',s)); vm.wait(('b',s))
            A=16+12*(s&1); B=BB+8*(s%ND)
            for c in range(3):
                for tt in range(2):
                    r=ar(16*(2*c+tt),16); cc=r if s>0 else '0'
                    e(f"v_mfma_f32_32x32x16_bf16 {r}, {vr(A+4*c,4)}, {vr(B+4*tt,4)}, {cc}")
            if s+ND<NST:
                dmas(s+ND); bload(s+ND)
        e("s_waitcnt vmcnt(0) lgkmcnt(0)")
        self.lds_inc(C_F2, 8, vCNT)
        if self.stop=='ffn2': return
        self.outproj()

    def outproj(self):
        e=self.e; a=self.a
        vL=6; vCNT=1
        vW=[7,14,15]; vTR=13; vB=12; vW4=[8,9,10]
        e(f"""s_mul_i32 s{sRING}, s{sI}, {RING_F_SZ}
              s_add_u32 s{sRING}, s{sRING}, {RING_F}""")
        self.tr_addr(vTR, vL, 4, sRING, 11)
        e(f"""v_lshrrev_b32 v11, 2, v{vL}
              v_and_b32 v5, 3, v11
              v_lshrrev_b32 v11, 2, v11
              v_and_b32 v4, 1, v11
              v_lshrrev_b32 v11, 1, v11
              v_lshl_add_u32 v4, v11, 1, v4
              v_mul_u32_u24 v4, 20, v4
              v_add3_u32 v4, v4, v5, 16
              v_lshrrev_b32 v11, 2, v{vL}
              v_sub_u32 v4, v4, v11
              v_mul_i32_i24 v4, 1280, v4""")
        for c in range(3):
            e(f"v_add_u32 v{vW4[c]}, v{vW[c]}, v4")
        def frag(k,c):
            idx=3*k+c
            if idx<22: return ('v',16+4*idx)
            return ('a',96+4*(idx-22))
        vm=Cnt(a,'vmcnt',63); lg=Cnt(a,'lgkmcnt',15)
        def rows(k):
            jj,sp=divmod(k,5)
            return jj*80 + (20*sp if sp<4 else 0), sp==4
        e(f"s_mul_i32 s{sOFF2}, s{sI}, {160*1280}")
        def dmas(k):
            r0,sp=rows(k)
            e(f"s_add_u32 s{sOFF}, s{sOFF2}, {r0*1280}")
            for c in range(3):
                self.dma(SRD_WO, (vW4 if sp else vW)[c], sOFF, sRING, (k%2)*3072+1024*c); vm.issue(('d',k))
        dmas(0); dmas(1)
        for k in range(10):
            vm.wait(('d',k))
            for c in range(3):
                t,r=frag(k,c)
                e(f"ds_read_b64_tr_b16 {t}[{r}:{r+1}], v{vTR} offset:{(k%2)*3072+1024*c}"); lg.issue(('r',k))
                e(f"ds_read_b64_tr_b16 {t}[{r+2}:{r+3}], v{vTR} offset:{(k%2)*3072+1024*c+512}"); lg.issue(('r',k))
            if k+2<10:
                lg.wait(('r',k)); dmas(k+2)
        e("s_waitcnt lgkmcnt(0)")
        L=a.newlabel('Low')
        e(f"""s_cmp_lg_u32 s{sW}, 4
              s_cbranch_scc1 {L}""")
        e(f"""v_lshlrev_b32 v5, 7, v{vL}
              s_lshl_b32 s{sB}, s{sT}, 10
              s_add_u32 s{sB}, s{sB}, {OFLAG}""")
        self.get_nonce(8,vCNT)
        self.flag_poll(5, 8, 8, sB)
        self.lds_set(C_OR, 1, 8, vCNT)
        a.label(L)
        self.lds_spin(C_OR,1,8,vCNT)
        e(f"""s_lshl_b32 s{sK}, s{sT}, 1
              s_mul_i32 s{sK}, s{sK}, 40
              s_mul_i32 s{sA}, s{sI}, 10
              s_add_u32 s{sK}, s{sK}, s{sA}
              s_lshl_b32 s{sK}, s{sK}, 10
              s_add_u32 s{sK}, s{sK}, {OF}
              s_add_u32 s{sV}, s{sK}, {40*1024}""")
        vm=Cnt(a,'vmcnt',63)
        BB=104; NB=3
        def bload(k):
            b=BB+8*(k%NB)
            e(f"""buffer_load_dwordx4 {vr(b,4)}, v{vB}, {srd(SRD_WS)}, s{sK} offen sc1
                  buffer_load_dwordx4 {vr(b+4,4)}, v{vB}, {srd(SRD_WS)}, s{sV} offen sc1
                  s_add_u32 s{sK}, s{sK}, 1024
                  s_add_u32 s{sV}, s{sV}, 1024""")
            vm.issue(('b',k)); vm.issue(('b',k))
        for k in range(NB): bload(k)
        for k in range(10):
            vm.wait(('b',k))
            B=BB+8*(k%NB)
            for c in range(3):
                t,r=frag(k,c)
                for tt in range(2):
                    acc=ar(16*(2*c+tt),16)
                    e(f"v_mfma_f32_32x32x16_bf16 {acc}, {t}[{r}:{r+3}], {vr(B+4*tt,4)}, {acc}")
            if k+NB<10: bload(k+NB)
        e(f"""v_and_b32 v8, 31, v{vL}
              v_mul_u32_u24 v9, {PSTR}, v8
              v_lshrrev_b32 v8, 5, v{vL}
              v_lshl_add_u32 v9, v8, 4, v9
              s_mul_i32 s{sA}, s{sI}, {PSZ}
              v_add_u32 v9, s{sA}, v9""")
        if RED: e(f"v_add_u32 v9, {RED}, v9")
        for c in range(3):
            for tt in range(2):
                for rq in range(4 if c<2 else 2):
                    e(f"ds_write_b128 v9, {ar(16*(2*c+tt)+4*rq,4)} offset:{tt*32*PSTR+(8*c+2*rq)*16}")
        e("s_waitcnt lgkmcnt(0)")

    def final(self):
        e=self.e; a=self.a
        self.mk_srd(SRD_OUT,P_OUT,2621440)
        e("; ---- final ----")
        def item(vit, first):
            e(f"""v_mul_u32_u24 v8, 6554, v{vit}
                  v_lshrrev_b32 v8, 16, v8
                  v_mul_u32_u24 v9, 10, v8
                  v_sub_u32 v9, v{vit}, v9
                  s_lshl_b32 s{sA}, s{sT}, 6
                  v_add_u32 v10, s{sA}, v8
                  v_mul_u32_u24 v10, 1280, v10
                  v_lshl_add_u32 v10, v9, 4, v10
                  s_mul_i32 s{sA}, s{sJ}, 160
                  v_add_u32 v10, s{sA}, v10
                  buffer_load_dwordx4 v[12:15], v10, {srd(SRD_X)}, 0 offen
                  v_mul_u32_u24 v11, {PSTR}, v8
                  v_lshl_add_u32 v11, v9, 5, v11""")
            if RED: e(f"v_add_u32 v11, {RED}, v11")
            if first: e("s_barrier")
            for f in range(4):
                off=f*PSZ
                if off+16>65535:
                    e(f"v_add_u32 v7, {off}, v11")
                    e(f"ds_read_b128 {vr(16+8*f,4)}, v7\nds_read_b128 {vr(20+8*f,4)}, v7 offset:16")
                else:
                    e(f"ds_read_b128 {vr(16+8*f,4)}, v11 offset:{off}\nds_read_b128 {vr(20+8*f,4)}, v11 offset:{off+16}")
            e("s_waitcnt lgkmcnt(0)")
            for i in range(0,8,2):
                e(f"""v_pk_add_f32 v[{16+i}:{17+i}], v[{16+i}:{17+i}], v[{24+i}:{25+i}]
                      v_pk_add_f32 v[{32+i}:{33+i}], v[{32+i}:{33+i}], v[{40+i}:{41+i}]
                      v_pk_add_f32 v[{16+i}:{17+i}], v[{16+i}:{17+i}], v[{32+i}:{33+i}]""")
            e(f"""s_waitcnt vmcnt(0)
                  s_mov_b32 s{sB}, {hex(f2u(LN2))}""")
            for i in range(4):
                e(f"""v_lshlrev_b32 v48, 16, v{12+i}
                      v_and_b32 v49, 0xffff0000, v{12+i}
                      v_fma_f32 v48, v{16+2*i}, s{sB}, v48
                      v_fma_f32 v49, v{17+2*i}, s{sB}, v49
                      v_cvt_pk_bf16_f32 v{12+i}, v48, v49""")
            e(f"buffer_store_dwordx4 v[12:15], v10, {srd(SRD_OUT)}, 0 offen")
        item(0, True)
        e(f"""s_cmp_ge_u32 s{sW}, 2
              s_cbranch_scc1 L_exit
              v_add_u32 v2, 512, v0""")
        item(2, False)

    def build(self):
        a=self.a; e=self.e
        self.prologue()
        e(f"""s_cmp_ge_u32 s{sW}, 4
              s_cbranch_scc1 L_role_f""")
        self.role_a()
        if self.stop=='s2':
            self.dump_q()
        else:
            self.attention()
            self.o_reduce()
        e("s_branch L_join")
        a.label('L_role_f')
        self.role_f()
        a.label('L_join')
        if self.stop is None:
            self.final()
        a.label('L_exit')
        e("s_endpgm")
        lines,n=fix_hazards(a.L)
        return lines,n
    def dump_q(self):
        e=self.e
        self.lds_spin(C_Q,3,8,1)
        e(f"""v_lshlrev_b32 v9, 4, v6
              s_lshl_b32 s{sA}, s{sW}, 12
              v_add_u32 v9, s{sA}, v9
              v_add_u32 v10, {QF}, v9
              s_lshl_b32 s{sB}, s{sT}, 3
              s_add_u32 s{sB}, s{sB}, s{sJ}
              s_lshl_b32 s{sB}, s{sB}, 14
              s_add_u32 s{sB}, s{sB}, 0x1000000""")
        for i in range(4):
            e(f"""ds_read_b128 v[16:19], v10 offset:{1024*i}
                  s_waitcnt lgkmcnt(0)
                  buffer_store_dwordx4 v[16:19], v9, {srd(SRD_WS)}, s{sB} offen offset:{1024*i}
                  s_waitcnt vmcnt(0)""")

HEADER='''; Fused LayerNorm + MQA attention + SiLU FFN + residual, one persistent launch (256 workgroups, one per CU).
; Kernarg layout (88 bytes, ptrs only): A_x, A_wq, A_wk, A_wv, A_wo, B_x, B_w1, B_w2, d_out, d_debug, d_ws
; @launch grid=(256,1,1) block=(512,1,1) lds=%d
.amdgcn_target "amdgcn-amd-amdhsa--gfx950"
.text
.globl %s
.p2align 8
.type %s,@function
%s:
''' % (LDS_TOTAL,KNAME,KNAME,KNAME)
FOOTER='''
.section .rodata,"a"
.p2align 6
.amdhsa_kernel %s
  .amdhsa_next_free_vgpr 256
  .amdhsa_next_free_sgpr 102
  .amdhsa_accum_offset 128
  .amdhsa_group_segment_fixed_size 0
  .amdhsa_kernarg_size 88
  .amdhsa_user_sgpr_count 2
  .amdhsa_user_sgpr_kernarg_segment_ptr 1
  .amdhsa_system_sgpr_workgroup_id_x 1
.end_amdhsa_kernel
''' % KNAME

def generate(path, stop=None, opts=None):
    global WS_SIZE
    if stop=='s2': WS_SIZE=0x2000000
    g=G(stop,opts)
    lines,n=g.build()
    open(path,'w').write(HEADER+"\n".join(lines)+FOOTER)
    print("generated",path,len(lines),"lines; nops inserted:",n)

if __name__=="__main__":
    stop=None; path="parallel_sum__grouped_kv_mqa__dense_activation_silu__prompt.s"
    opts={}
    for x in sys.argv[1:]:
        if x.startswith("stop="): stop=x[5:]
        elif x.startswith("out="): path=x[4:]
        else:
            k,v=x.split("="); opts[k]=float(v) if '.' in v else int(v)
    generate(path,stop,opts)
```

```python
import sys, math, struct
from asmlib import Asm, Cnt, fix_hazards

KNAME="parallel_sum__grouped_kv_mqa__dense_activation_silu__prompt_kernel"
def f2u(x): return struct.unpack('<I',struct.pack('<f',x))[0]
LOG2E=1.4426950408889634; LN2=0.6931471805599453
XN=0; XNS=1296
RED=0
PSTR=336; PSZ=64*PSTR
QF=86016
RINGS=102400
NS_A=14; RING_A=RINGS; RING_A_SZ=NS_A*1024
NS_F=7;  RING_F=RINGS; RING_F_SZ=NS_F*2048
CNT=159744
C_Q=0; C_H=4; C_NLO=8; C_NHI=12; C_KV=16; C_KMAX=20; C_HR=24; C_OW=28; C_OS=32; C_OR=36; C_X=40; C_F2=44; C_MX=48; C_XA=52; C_QL=56
LDS_TOTAL=163840
F2RING_SZ=18432
KF=0; VF=0x20000; KVFLAG=0x40000; HFLAG=0x48000; OFLAG=0x50000; DBG=0x60000
OF=0x100000; HF=0x400000; WS_SIZE=0xB00000
OOB=0x80000000
sT=4; sJ=5; sW=6
P_X=8; P_WQ=10; P_WK=12; P_WV=14; P_WO=16; P_W1=20; P_W2=22; P_OUT=24; P_DBG=26; P_WS=28
SRD_X=32; SRD_S=36; SRD_W2=40; SRD_WO=44; SRD_WS=48; SRD_OUT=52
sOFF=56; sSTEP=57; sOFF2=58; sRING=59; sNLO=60; sNHI=61
sA=62; sB=63; sC=64; sD=65; sE=66; sF=67; sG=68; sH=69
sONES=70; sSPIN=71; sM=72
sHM=86; sK=76; sV=77; sLOOP=78; sCF1=79; sCF2=80; sTT=81; sP=82; sI=83; sQ=84; sR=85
def srd(n): return f"s[{n}:{n+3}]"
def vr(a,n=1): return f"v{a}" if n==1 else f"v[{a}:{a+n-1}]"
def ar(a,n=1): return f"a{a}" if n==1 else f"a[{a}:{a+n-1}]"

STOP=None
SPIN_MAX=400000

class G:
    def __init__(self, stop=None, opts=None):
        self.a=Asm(); self.stop=stop; self.o=opts or {}
    def e(self,s): self.a.e(s)
    def mk_srd(self,dst,ptr,size):
        self.e(f"""s_mov_b32 s{dst}, s{ptr}
                   s_mov_b32 s{dst+1}, s{ptr+1}
                   s_mov_b32 s{dst+2}, {size}
                   s_mov_b32 s{dst+3}, 0x20000""")
    def lds_spin(self, off, val, vtmp, vcnt):
        L=self.a.newlabel('Lspin'); D=self.a.newlabel('Lspd')
        self.e(f"s_mov_b32 s{sSPIN}, {SPIN_MAX}")
        self.a.label(L)
        self.e(f"""ds_read_b32 v{vtmp}, v{vcnt} offset:{off}
                   s_waitcnt lgkmcnt(0)
                   v_readfirstlane_b32 s{sA}, v{vtmp}
                   s_cmp_ge_u32 s{sA}, {val}
                   s_cbranch_scc1 {D}
                   s_sleep 1
                   s_sub_u32 s{sSPIN}, s{sSPIN}, 1
                   s_cmp_lg_u32 s{sSPIN}, 0
                   s_cbranch_scc1 {L}""")
        self.a.label(D)
    def lds_inc(self, off, vtmp, vcnt, rtn=False):
        self.e(f"""s_mov_b64 exec, 1
                   v_mov_b32 v{vtmp}, 1""")
        if rtn:
            self.e(f"""ds_add_rtn_u32 v{vtmp}, v{vcnt}, v{vtmp} offset:{off}
                       s_waitcnt lgkmcnt(0)
                       v_readfirstlane_b32 s{sA}, v{vtmp}""")
        else:
            self.e(f"ds_add_u32 v{vcnt}, v{vtmp} offset:{off}")
        self.e("s_mov_b64 exec, -1")
    def get_nonce(self, vtmp, vcnt):
        self.lds_spin(C_NLO,1,vtmp,vcnt)
        self.e(f"""ds_read_b64 v[{vtmp}:{vtmp+1}], v{vcnt} offset:{C_NLO}
                   s_waitcnt lgkmcnt(0)
                   v_readfirstlane_b32 s{sNLO}, v{vtmp}
                   v_readfirstlane_b32 s{sNHI}, v{vtmp+1}""")
    def flag_store(self, soff_sreg, vtmp, payload=None):
        self.e(f"""s_mov_b64 exec, 1
                   v_mov_b32 v{vtmp}, s{sNLO}
                   v_mov_b32 v{vtmp+1}, s{sNHI}
                   v_mov_b32 v{vtmp+2}, {('s%d'%payload) if payload is not None else 0}
                   v_mov_b32 v{vtmp+3}, 0
                   v_mov_b32 v{vtmp+4}, 0
                   buffer_store_dwordx4 v[{vtmp}:{vtmp+3}], v{vtmp+4}, {srd(SRD_WS)}, s{soff_sreg} offen sc1
                   s_mov_b64 exec, -1""")
    def flag_poll(self, voff, vtmp, nl, soff_sreg):
        L=self.a.newlabel('Lpoll'); D=self.a.newlabel('Lpd')
        mask=(1<<nl)-1
        self.e(f"""s_mov_b32 s{sSPIN}, {SPIN_MAX}
                   s_mov_b32 s{sM}, {mask & 0xffffffff}
                   s_mov_b32 s{sM+1}, {mask>>32}
                   s_mov_b64 exec, s[{sM}:{sM+1}]""")
        self.a.label(L)
        self.e(f"""buffer_load_dwordx4 v[{vtmp}:{vtmp+3}], v{voff}, {srd(SRD_WS)}, s{soff_sreg} offen sc1
                   s_waitcnt vmcnt(0)
                   v_cmp_ne_u32 vcc, s{sNLO}, v{vtmp}
                   v_cmp_ne_u32 s[{sM+2}:{sM+3}], s{sNHI}, v{vtmp+1}
                   s_or_b64 vcc, vcc, s[{sM+2}:{sM+3}]
                   s_cmp_eq_u64 vcc, 0
                   s_cbranch_scc1 {D}
                   s_sleep 1
                   s_sub_u32 s{sSPIN}, s{sSPIN}, 1
                   s_cmp_lg_u32 s{sSPIN}, 0
                   s_cbranch_scc1 {L}""")
        self.a.label(D)
        self.e("s_mov_b64 exec, -1")
    def lds_set(self, off, src, vtmp, vcnt):
        self.e(f"""v_mov_b32 v{vtmp}, {src}
                   s_mov_b64 exec, 1
                   ds_write_b32 v{vcnt}, v{vtmp} offset:{off}
                   s_mov_b64 exec, -1""")

    def stamp(self,i):
        if not self.o.get('prof'): return
        assert i<12
        self.e(f"""s_memtime s[100:101]
                   s_waitcnt lgkmcnt(0)
                   s_mov_b32 s{88+i}, s100""")
    def dump_stamps(self):
        if not self.o.get('prof'): return
        e=self.e
        e(f"""s_memrealtime s[100:101]
              s_waitcnt lgkmcnt(0)
              s_lshl_b32 s{sA}, s2, 3
              s_add_u32 s{sA}, s{sA}, s{sW}
              s_lshl_b32 s{sA}, s{sA}, 6
              s_add_u32 s{sA}, s{sA}, {DBG}
              s_mov_b64 exec, 1
              v_mov_b32 v8, 0""")
        for i in range(0,12,4):
            for k in range(4): e(f"v_mov_b32 v{12+k}, s{88+i+k}")
            e(f"buffer_store_dwordx4 v[12:15], v8, {srd(SRD_WS)}, s{sA} offen offset:{4*i}\ns_waitcnt vmcnt(0)")
        e(f"""v_mov_b32 v12, s18
              v_mov_b32 v13, s100
              s_getreg_b32 s{sB}, hwreg(HW_REG_XCC_ID)
              v_mov_b32 v14, s{sB}
              s_getreg_b32 s{sB}, hwreg(HW_REG_HW_ID)
              v_mov_b32 v15, s{sB}
              buffer_store_dwordx4 v[12:15], v8, {srd(SRD_WS)}, s{sA} offen offset:48
              s_waitcnt vmcnt(0)
              s_mov_b64 exec, -1""")

    def prologue(self):
        e=self.e
        e(f"""s_cmp_ge_u32 s2, 256
              s_cbranch_scc1 L_exit
              ;PROF0
              s_load_dwordx16 s[8:23], s[0:1], 0
              s_load_dwordx4 s[24:27], s[0:1], 64
              s_load_dwordx2 s[28:29], s[0:1], 80
              s_and_b32 s3, s2, 7
              s_lshl_b32 s3, s3, 2
              s_lshr_b32 s{sT}, s2, 6
              s_add_u32 s{sT}, s{sT}, s3
              s_lshr_b32 s{sJ}, s2, 3
              s_and_b32 s{sJ}, s{sJ}, 7
              v_lshrrev_b32 v1, 6, v0
              v_lshrrev_b32 v2, 3, v0
              v_and_b32 v3, 7, v0
              v_readfirstlane_b32 s{sW}, v1
              s_lshl_b32 s3, s{sT}, 6
              v_add_u32 v4, s3, v2
              v_mul_u32_u24 v4, 1280, v4
              v_lshl_add_u32 v4, v3, 4, v4
              s_waitcnt lgkmcnt(0)""")
        if self.o.get('prof'):
            e("s_memrealtime s[100:101]\ns_waitcnt lgkmcnt(0)\ns_mov_b32 s18, s100")
        self.stamp(0)
        self.mk_srd(SRD_X,P_X,2621440)
        for i in range(10):
            e(f"buffer_load_dwordx4 v[{16+4*i}:{19+4*i}], v4, {srd(SRD_X)}, 0 offen offset:{128*i}")
        e(f"""v_mul_u32_u24 v5, {XNS}, v2
              v_lshl_add_u32 v5, v3, 4, v5
              v_and_b32 v6, 63, v0
              v_mov_b32 v1, {CNT}
              s_mov_b32 s{sONES}, 0x3f803f80""")
        self.mk_srd(SRD_WS,P_WS,WS_SIZE)
        L=self.a.newlabel('Lw0')
        e(f"""s_cmp_lg_u32 s{sW}, 0
              s_cbranch_scc1 {L}
              v_mov_b32 v8, 0
              v_lshl_add_u32 v9, v6, 2, v1
              v_cmp_gt_u32 vcc, 16, v6
              s_and_saveexec_b64 s[{sM}:{sM+1}], vcc
              ds_write_b32 v9, v8
              s_mov_b64 exec, -1
              s_cmp_lg_u32 s2, 0
              s_cbranch_scc1 {L}
              s_memrealtime s[{sM}:{sM+1}]
              s_waitcnt lgkmcnt(0)
              s_or_b32 s{sM}, s{sM}, 1
              s_mov_b64 exec, 1
              v_mov_b32 v8, s{sM}
              v_mov_b32 v9, s{sM+1}
              v_mov_b32 v10, 0
              global_store_dwordx2 v10, v[8:9], s[{P_DBG}:{P_DBG+1}] sc1
              s_mov_b64 exec, -1""")
        self.a.label(L)
        self.nvm_extra=1

    def layernorm(self, vm_after):
        e=self.e
        e(f"s_waitcnt vmcnt({0 if self.o.get('lnwait0') else vm_after})")
        self.stamp(1)
        e("v_mov_b32 v8, 0\nv_mov_b32 v9, 0\nv_mov_b32 v10, 0\nv_mov_b32 v11, 0")
        for r in range(40):
            e(f"v_dot2_f32_bf16 v{8+(r&1)}, v{16+r}, s{sONES}, v{8+(r&1)}")
            e(f"v_dot2_f32_bf16 v{10+(r&1)}, v{16+r}, v{16+r}, v{10+(r&1)}")
        e("v_add_f32 v8, v8, v9\nv_add_f32 v10, v10, v11")
        for m in ("quad_perm:[1,0,3,2]","quad_perm:[2,3,0,1]","row_half_mirror"):
            e(f"v_add_f32_dpp v8, v8, v8 {m} row_mask:0xf bank_mask:0xf")
            e(f"v_add_f32_dpp v10, v10, v10 {m} row_mask:0xf bank_mask:0xf")
        e(f"""v_mul_f32 v8, {hex(f2u(1/640))}, v8
              v_mul_f32 v10, {hex(f2u(1/640))}, v10
              v_fma_f32 v10, -v8, v8, v10
              v_max_f32 v10, 0, v10
              v_add_f32 v10, {hex(f2u(1e-5))}, v10
              v_rsq_f32 v10, v10
              v_mul_f32 v10, {hex(f2u(LOG2E))}, v10
              v_mul_f32 v12, v8, v10
              v_sub_f32 v12, 0, v12
              v_mov_b32 v11, v10
              v_mov_b32 v13, v12""")
        for i in range(10):
            for k in range(4):
                r=16+4*i+k
                t=56+ 2*((4*i+k)%4)
                e(f"""v_lshlrev_b32 v{t}, 16, v{r}
                      v_and_b32 v{t+1}, 0xffff0000, v{r}
                      v_pk_fma_f32 v[{t}:{t+1}], v[{t}:{t+1}], v[10:11], v[12:13]
                      v_cvt_pk_bf16_f32 v{r}, v{t}, v{t+1}""")
            e(f"ds_write_b128 v5, v[{16+4*i}:{19+4*i}] offset:{128*i}")
        e("s_waitcnt lgkmcnt(0)\ns_barrier")
        self.stamp(2)

    def dma(self, srd_n, voff, soff_s, lds_base_s, lds_imm, mid=None):
        self.e(f"s_add_u32 m0, s{lds_base_s}, {lds_imm}")
        if mid: self.e(mid)
        self.e(f"buffer_load_dwordx4 v{voff}, {srd(srd_n)}, s{soff_s} offen lds")
    def stream_voff(self, vdst, vlane, s_rowstride, s_colbyte, s_npieces, vt):
        self.e(f"""v_lshrrev_b32 v{vt}, 2, v{vlane}
                   v_mul_lo_u32 v{vdst}, s{s_rowstride}, v{vt}
                   v_and_b32 v{vt}, 3, v{vlane}
                   v_lshl_add_u32 v{vdst}, v{vt}, 4, v{vdst}
                   v_add_u32 v{vdst}, s{s_colbyte}, v{vdst}
                   v_cmp_gt_u32 vcc, s{s_npieces}, v{vt}
                   v_mov_b32 v{vt}, {hex(OOB)}
                   v_cndmask_b32 v{vdst}, v{vt}, v{vdst}, vcc""")
    def tr_addr(self, vdst, vlane, hstride_rows, s_base, vt):
        self.e(f"""v_lshrrev_b32 v{vdst}, 5, v{vlane}
                   v_mul_u32_u24 v{vdst}, {hstride_rows*64}, v{vdst}
                   v_bfe_u32 v{vt}, v{vlane}, 2, 2
                   v_lshl_add_u32 v{vdst}, v{vt}, 6, v{vdst}
                   v_bfe_u32 v{vt}, v{vlane}, 4, 1
                   v_lshl_add_u32 v{vdst}, v{vt}, 5, v{vdst}
                   v_and_b32 v{vt}, 3, v{vlane}
                   v_lshl_add_u32 v{vdst}, v{vt}, 3, v{vdst}
                   v_add_u32 v{vdst}, s{s_base}, v{vdst}""")
    def l2_prefetch_rows(self, srd_n, s_rowstride, s_colbyte, vlane, vt, vdummy, nins=3, row0=0, rstep=160):
        self.e(f"""s_and_b32 s{sA}, s{sT}, 3
                   s_mul_i32 s{sA}, s{sA}, {rstep}
                   s_add_u32 s{sA}, s{sA}, {row0}
                   v_add_u32 v{vt}, s{sA}, v{vlane}
                   v_mul_lo_u32 v{vt}, s{s_rowstride}, v{vt}
                   v_add_u32 v{vt}, s{s_colbyte}, v{vt}
                   s_lshl_b32 s{sA}, s{s_rowstride}, 6
                   s_mov_b32 s{sB}, 0""")
        for i in range(nins):
            self.e(f"buffer_load_dword v{vdummy}, v{vt}, {srd(srd_n)}, s{sB} offen")
            if i+1<nins: self.e(f"s_add_u32 s{sB}, s{sB}, s{sA}")
        return nins

    def silu_store(self, D, T, voff, soff_s):
        e=self.e
        for half in range(2):
            b=D+8*half
            for i in range(8): e(f"v_exp_f32 v{T+i}, -v{b+i}")
            for i in range(0,8,2): e(f"v_pk_add_f32 v[{T+i}:{T+i+1}], v[{T+i}:{T+i+1}], 1.0 op_sel_hi:[1,0]")
            for i in range(8): e(f"v_rcp_f32 v{T+i}, v{T+i}")
            for i in range(0,8,2): e(f"v_pk_mul_f32 v[{b+i}:{b+i+1}], v[{b+i}:{b+i+1}], v[{T+i}:{T+i+1}]")
            for i in range(4): e(f"v_cvt_pk_bf16_f32 v{b+i}, v{b+2*i}, v{b+2*i+1}")
            e(f"buffer_store_dwordx4 v[{b}:{b+3}], v{voff}, {srd(SRD_WS)}, s{soff_s} offen offset:{1024*half} sc1")

    def publish_h(self, nprod_s, vt, vcnt):
        e=self.e
        e("s_waitcnt vmcnt(0)")
        self.lds_inc(C_H, vt, vcnt, rtn=True)
        L=self.a.newlabel('Lnh')
        e(f"""s_add_u32 s{sA}, s{sA}, 1
              s_cmp_lg_u32 s{sA}, s{nprod_s}
              s_cbranch_scc1 {L}""")
        self.get_nonce(vt, vcnt)
        e(f"""s_lshl_b32 s{sB}, s{sT}, 3
              s_add_u32 s{sB}, s{sB}, s{sJ}
              s_lshl_b32 s{sB}, s{sB}, 7
              s_add_u32 s{sB}, s{sB}, {HFLAG}""")
        self.flag_store(sB, vt)
        self.a.label(L)

    def role_a(self):
        e=self.e; a=self.a
        vL=6; vCNT=1
        vS=7
        vTR=14
        vB0=15
        e(f"""; ---- role A: stream set-up ----
              s_mov_b32 s{sC}, 1280
              s_mul_i32 s{sD}, s{sJ}, 160
              s_lshl_b32 s{sE}, s{sW}, 6
              s_add_u32 s{sD}, s{sD}, s{sE}
              s_cmp_eq_u32 s{sW}, 2
              s_cselect_b32 s{sE}, 2, 4
              s_mov_b32 s{SRD_S}, s{P_WQ}
              s_mov_b32 s{SRD_S+1}, s{P_WQ+1}
              s_mov_b32 s{SRD_S+2}, 819200
              s_mov_b32 s{SRD_S+3}, 0x20000
              s_cmp_eq_u32 s{sW}, 3
              s_cbranch_scc0 L_a_setup_done
              s_cmp_ge_u32 s{sJ}, 6
              s_cbranch_scc1 L_a_setup_kv
              s_mov_b32 s{sC}, 3456
              s_mul_i32 s{sD}, s{sJ}, 7
              s_add_u32 s{sD}, s{sD}, 6
              s_mov_b32 s{sCF1}, s{sD}
              s_lshl_b32 s{sD}, s{sD}, 6
              s_mov_b32 s{sE}, 4
              s_mov_b32 s{SRD_S}, s{P_W1}
              s_mov_b32 s{SRD_S+1}, s{P_W1+1}
              s_mov_b32 s{SRD_S+2}, 2211840
              s_branch L_a_setup_done
            L_a_setup_kv:
              s_mov_b32 s{sC}, 40
              s_mov_b32 s{sD}, 0
              s_mov_b32 s{sE}, 3
              s_cmp_eq_u32 s{sJ}, 6
              s_cselect_b32 s{SRD_S}, s{P_WK}, s{P_WV}
              s_cselect_b32 s{SRD_S+1}, s{P_WK+1}, s{P_WV+1}
              s_mov_b32 s{SRD_S+2}, 25600
            L_a_setup_done:
              s_lshl_b32 s{sSTEP}, s{sC}, 4
              s_sub_u32 s{sOFF}, 0, s{sSTEP}
              s_mul_i32 s{sRING}, s{sW}, {RING_A_SZ}
              s_add_u32 s{sRING}, s{sRING}, {RING_A}""")
        self.stream_voff(vS, vL, sC, sD, sE, 8)
        NS=NS_A
        adv=f"s_add_u32 s{sOFF}, s{sOFF}, s{sSTEP}"
        for s in range(NS):
            self.dma(SRD_S, vS, sOFF, sRING, 1024*s, adv)
        npf=self.l2_prefetch_rows(SRD_S, sC, sD, vL, 8, 127, nins=2, row0=16*NS_A, rstep=104) if self.o.get('pfA',1) else 0
        self.tr_addr(vTR, vL, 8, sRING, 8)
        e(f"""v_and_b32 v8, 31, v{vL}
              v_mul_u32_u24 v{vB0}, {XNS}, v8
              v_lshrrev_b32 v8, 5, v{vL}
              v_lshl_add_u32 v{vB0}, v8, 4, v{vB0}""")
        self.layernorm(NS+npf)
        e(f"""s_cmp_eq_u32 s{sW}, 3
              s_cselect_b32 s{sA}, 1, 0
              s_cmp_eq_u32 s{sJ}, 7
              s_cselect_b32 s{sB}, s{sA}, 0
              s_cmp_eq_u32 s{sB}, 1
              s_cbranch_scc1 L_a_s2_swapped""")
        D=64
        def s2(swap):
            vm=Cnt(a,'vmcnt',63); lg=Cnt(a,'lgkmcnt',15)
            for s in range(NS): vm.issue(('d',s))
            for i in range(npf): vm.issue(('pf',i))
            def reads(s):
                A=16+4*(s&1); B=24+8*(s&1)
                slot=(s%NS)*1024
                e(f"ds_read_b64_tr_b16 v[{A}:{A+1}], v{vTR} offset:{slot}"); lg.issue(('r',s))
                e(f"ds_read_b64_tr_b16 v[{A+2}:{A+3}], v{vTR} offset:{slot+256}"); lg.issue(('r',s))
                for tt in range(2):
                    e(f"ds_read_b128 v[{B+4*tt}:{B+4*tt+3}], v{vB0} offset:{tt*32*XNS+32*s}"); lg.issue(('r',s))
            vm.wait(('d',0)); reads(0)
            for s in range(40):
                if s+1<40:
                    vm.wait(('d',s+1)); reads(s+1)
                lg.wait(('r',s))
                A=16+4*(s&1); B=24+8*(s&1)
                for tt in range(2):
                    acc=vr(D+16*tt,16); c=acc if s>0 else '0'
                    if not swap: e(f"v_mfma_f32_32x32x16_bf16 {acc}, {vr(A,4)}, {vr(B+4*tt,4)}, {c}")
                    else:        e(f"v_mfma_f32_32x32x16_bf16 {acc}, {vr(B+4*tt,4)}, {vr(A,4)}, {c}")
                if s+NS<40:
                    self.dma(SRD_S, vS, sOFF, sRING, 1024*(s%NS), adv); vm.issue(('d',s+NS))
            e("s_waitcnt vmcnt(0)")
            self.stamp(3)
            self.lds_inc(C_X, 8, vCNT)
            self.lds_inc(C_XA, 8, vCNT)
        s2(False)
        e(f"""s_cmp_eq_u32 s{sW}, 3
              s_cbranch_scc0 L_a_ep_q
              s_cmp_eq_u32 s{sJ}, 6
              s_cbranch_scc1 L_a_ep_k
              s_branch L_a_ep_h""")
        a.label('L_a_s2_swapped')
        s2(True)
        e(f"""; ---- V epilogue ----
              v_and_b32 v8, 31, v{vL}
              v_cmp_gt_u32 vcc, 20, v8
              v_cndmask_b32 v10, 0, -1, vcc
              v_cmp_eq_u32 vcc, 20, v8
              v_mov_b32 v9, s{sONES}
              v_cndmask_b32 v11, 0, v9, vcc
              v_lshlrev_b32 v12, 4, v{vL}""")
        for tt in range(2):
            e(f"""s_lshl_b32 s{sB}, s{sT}, 1
                  s_add_u32 s{sB}, s{sB}, {tt}
                  s_lshl_b32 s{sB}, s{sB}, 11
                  s_add_u32 s{sB}, s{sB}, {VF}""")
            for fa in range(2):
                b=D+16*tt+8*fa
                for i in range(4): e(f"v_cvt_pk_bf16_f32 v{b+i}, v{b+2*i}, v{b+2*i+1}")
                for i in range(4): e(f"v_and_or_b32 v{b+i}, v{b+i}, v10, v11")
                e(f"buffer_store_dwordx4 v[{b}:{b+3}], v12, {srd(SRD_WS)}, s{sB} offen offset:{1024*fa} sc1")
        e("s_waitcnt vmcnt(0)")
        self.get_nonce(8, vCNT)
        e(f"""s_add_u32 s{sB}, s{sT}, 32
              s_lshl_b32 s{sB}, s{sB}, 7
              s_add_u32 s{sB}, s{sB}, {KVFLAG}""")
        self.flag_store(sB, 8)
        e("s_branch L_a_ep_done")
        a.label('L_a_ep_k')
        e(f"""; ---- K epilogue ----
              v_lshlrev_b32 v12, 4, v{vL}
              v_lshlrev_b32 v13, 3, v{vL}
              v_cmp_gt_u32 s[{sM}:{sM+1}], 32, v{vL}
              v_mov_b32 v20, 0""")
        for tt in range(2):
            b=D+16*tt
            e(f"""s_lshl_b32 s{sB}, s{sT}, 1
                  s_add_u32 s{sB}, s{sB}, {tt}
                  s_mul_i32 s{sB}, s{sB}, 1536
                  s_add_u32 s{sB}, s{sB}, {KF}""")
            for i in range(6): e(f"v_cvt_pk_bf16_f32 v{b+i}, v{b+2*i}, v{b+2*i+1}")
            e(f"""v_cndmask_b32 v{b+4}, 0, v{b+4}, s[{sM}:{sM+1}]
                  v_cndmask_b32 v{b+5}, 0, v{b+5}, s[{sM}:{sM+1}]
                  v_mov_b32 v21, 0""")
            for i in range(6): e(f"v_dot2_f32_bf16 v21, v{b+i}, v{b+i}, v21")
            e(f"""v_mov_b32 v22, s{sONES}
                  v_mov_b32 v23, 0x3f80
                  v_cndmask_b32 v{b+4}, v22, v{b+4}, s[{sM}:{sM+1}]
                  v_cndmask_b32 v{b+5}, v23, v{b+5}, s[{sM}:{sM+1}]
                  buffer_store_dwordx4 v[{b}:{b+3}], v12, {srd(SRD_WS)}, s{sB} offen sc1
                  buffer_store_dwordx2 v[{b+4}:{b+5}], v13, {srd(SRD_WS)}, s{sB} offen offset:1024 sc1
                  v_mov_b32 v22, v21
                  v_permlane32_swap_b32 v22, v21
                  v_add_f32 v21, v21, v22
                  v_max_f32 v20, v20, v21""")
        for m in ("quad_perm:[1,0,3,2]","quad_perm:[2,3,0,1]","row_half_mirror","row_mirror"):
            e(f"v_max_f32_dpp v20, v20, v20 {m} row_mask:0xf bank_mask:0xf")
        e(f"""v_mov_b32 v21, v20
              v_permlane16_swap_b32 v21, v20
              v_max_f32 v20, v20, v21
              v_readfirstlane_b32 s{sC}, v20
              s_waitcnt vmcnt(0)""")
        self.get_nonce(8, vCNT)
        e(f"""s_lshl_b32 s{sB}, s{sT}, 7
              s_add_u32 s{sB}, s{sB}, {KVFLAG}""")
        self.flag_store(sB, 8, payload=sC)
        e("s_branch L_a_ep_done")
        a.label('L_a_ep_h')
        e(f"v_lshlrev_b32 v12, 4, v{vL}")
        for tt in range(2):
            e(f"""s_lshl_b32 s{sB}, s{sT}, 1
                  s_add_u32 s{sB}, s{sB}, {tt}
                  s_mul_i32 s{sB}, s{sB}, 108
                  s_lshl_b32 s{sC}, s{sCF1}, 1
                  s_add_u32 s{sB}, s{sB}, s{sC}
                  s_lshl_b32 s{sB}, s{sB}, 10
                  s_add_u32 s{sB}, s{sB}, {HF}""")
            self.silu_store(D+16*tt, 16, 12, sB)
        e(f"s_mov_b32 s{sD}, 5")
        self.publish_h(sD, 8, vCNT)
        e("s_branch L_a_ep_done")
        a.label('L_a_ep_q')
        c1=LN2/math.sqrt(20.0)
        e(f"""v_mov_b32 v10, {hex(f2u(c1))}
              v_mov_b32 v11, v10
              v_and_b32 v8, 31, v{vL}
              v_lshlrev_b32 v12, 4, v8
              v_add_u32 v12, {QF}, v12
              v_lshrrev_b32 v13, 5, v{vL}
              s_cmp_eq_u32 s{sW}, 1
              s_cbranch_scc1 L_a_ep_q1
              s_cmp_eq_u32 s{sW}, 2
              s_cbranch_scc1 L_a_ep_q2""")
        def qconst(g):
            head,dq=divmod(g,5)
            return head*4096 + ((dq&1)*512+(dq>>1)*8 if dq<4 else 1024)
        for c in range(3):
            if c>0: a.label(f'L_a_ep_q{c}')
            for rq in range(4 if c<2 else 2):
                C0=qconst(8*c+2*rq); C1=qconst(8*c+2*rq+1)
                e(f"""s_mov_b32 s{sA}, {C1-C0}
                      v_mad_i32_i24 v9, v13, s{sA}, v12""")
                for tt in range(2):
                    b=D+16*tt+4*rq
                    e(f"""v_pk_mul_f32 v[{b}:{b+1}], v[{b}:{b+1}], v[10:11]
                          v_pk_mul_f32 v[{b+2}:{b+3}], v[{b+2}:{b+3}], v[10:11]
                          v_cvt_pk_bf16_f32 v{b}, v{b}, v{b+1}
                          v_cvt_pk_bf16_f32 v{b+1}, v{b+2}, v{b+3}
                          ds_write_b64 v9, v[{b}:{b+1}] offset:{C0+2048*tt}""")
            e("s_waitcnt lgkmcnt(0)")
            self.lds_inc(C_Q, 8, vCNT)
            if c<2: e("s_branch L_a_ep_done")
        a.label('L_a_ep_done')
        self.stamp(4)

    def attention(self):
        e=self.e; a=self.a
        vL=6; vCNT=1
        Q=12; S0=60; S1=76; P=92; KV=(100,114)
        vK16=2; vK8=3; vV16=4
        def Q1(ct): return vr(Q+6*ct,4)
        def Q2(ct): return vr(Q+6*ct+4,2)
        self.lds_spin(C_Q,3,8,vCNT)
        e(f"""v_and_b32 v8, 31, v{vL}
              v_lshlrev_b32 v9, 4, v{vL}
              v_add_u32 v9, {QF}, v9
              v_lshlrev_b32 v10, 4, v8
              v_add_u32 v10, {QF+1024}, v10""")
        for ct in range(8):
            e(f"ds_read_b128 {Q1(ct)}, v9 offset:{2048*ct}")
            e(f"ds_read_b64 {Q2(ct)}, v10 offset:{2048*ct}")
            if ct%4==3: e("s_waitcnt lgkmcnt(0)")
        self.lds_inc(C_QL,8,vCNT)
        e(f"v_cmp_gt_u32 s[{sHM}:{sHM+1}], 32, v{vL}")
        for i in range(128): e(f"v_accvgpr_write_b32 a{i}, 0")
        for ct in range(8):
            q2=Q+6*ct+4
            e(f"""v_cndmask_b32 v{q2}, 0, v{q2}, s[{sHM}:{sHM+1}]
                  v_cndmask_b32 v{q2+1}, 0, v{q2+1}, s[{sHM}:{sHM+1}]""")
        for ct in range(8):
            n=S0+ct
            e(f"v_mov_b32 v{n}, 0")
            for i in range(6): e(f"v_dot2_f32_bf16 v{n}, v{Q+6*ct+i}, v{Q+6*ct+i}, v{n}")
        for ct in range(8):
            n=S0+ct; t=S1+ct
            e(f"""v_mov_b32 v{t}, v{n}
                  v_permlane32_swap_b32 v{t}, v{n}
                  v_add_f32 v{n}, v{n}, v{t}""")
        e(f"""v_lshlrev_b32 v{vK16}, 4, v{vL}
              v_lshlrev_b32 v{vK8}, 3, v{vL}
              v_and_b32 v8, 31, v{vL}
              v_cmp_gt_u32 vcc, 21, v8
              v_mov_b32 v9, {hex(OOB)}
              v_cndmask_b32 v{vV16}, v9, v{vK16}, vcc""")
        L=a.newlabel('Lkvw')
        e(f"""s_cmp_lg_u32 s{sW}, 0
              s_cbranch_scc1 {L}""")
        self.get_nonce(8,vCNT)
        e(f"""v_lshlrev_b32 v5, 7, v{vL}
              s_mov_b32 s{sB}, {KVFLAG}""")
        self.flag_poll(5, 8, 64, sB)
        for m in ("quad_perm:[1,0,3,2]","quad_perm:[2,3,0,1]","row_half_mirror","row_mirror"):
            e(f"v_max_f32_dpp v10, v10, v10 {m} row_mask:0xf bank_mask:0xf")
        e(f"""v_mov_b32 v11, v10
              v_permlane16_swap_b32 v11, v10
              v_max_f32 v10, v10, v11
              v_mov_b32 v11, v10
              v_permlane32_swap_b32 v11, v10
              v_max_f32 v10, v10, v11
              s_mov_b64 exec, 1
              ds_write_b32 v{vCNT}, v10 offset:{C_KMAX}
              s_waitcnt lgkmcnt(0)
              v_mov_b32 v10, 1
              ds_write_b32 v{vCNT}, v10 offset:{C_KV}
              s_mov_b64 exec, -1""")
        a.label(L)
        self.lds_spin(C_KV,1,8,vCNT)
        self.stamp(5)
        e(f"""s_lshl_b32 s{sA}, s{sW}, 4
              s_mul_i32 s{sK}, s{sA}, 1536
              s_add_u32 s{sK}, s{sK}, {KF}
              s_lshl_b32 s{sV}, s{sA}, 11
              s_add_u32 s{sV}, s{sV}, {VF}
              s_mov_b32 s{sQ}, s{sK}
              s_mov_b32 s{sR}, s{sV}""")
        def kvload(st):
            b=KV[st]
            e(f"""buffer_load_dwordx4 {vr(b,4)}, v{vK16}, {srd(SRD_WS)}, s{sK} offen sc1
                  buffer_load_dwordx2 {vr(b+4,2)}, v{vK8}, {srd(SRD_WS)}, s{sK} offen offset:1024 sc1
                  buffer_load_dwordx4 {vr(b+6,4)}, v{vV16}, {srd(SRD_WS)}, s{sV} offen sc1
                  buffer_load_dwordx4 {vr(b+10,4)}, v{vV16}, {srd(SRD_WS)}, s{sV} offen offset:1024 sc1
                  s_add_u32 s{sK}, s{sK}, 1536
                  s_add_u32 s{sV}, s{sV}, 2048""")
        kvload(0)
        e(f"""ds_read_b32 v8, v{vCNT} offset:{C_KMAX}
              s_waitcnt lgkmcnt(0)
              v_mov_b32 v9, 0""")
        for ct in range(8):
            n=S0+ct
            e(f"""v_mul_f32 v{n}, v{n}, v8
                  v_sqrt_f32 v{n}, v{n}
                  v_mul_f32 v{n}, {hex(f2u(1+2**-6))}, v{n}
                  v_max_f32 v9, v9, v{n}""")
        T=self.o.get('T',48.0)
        e(f"""s_mov_b32 s{sA}, {hex(f2u(T))}
              v_cmp_nge_f32 vcc, s{sA}, v9
              s_cmp_eq_u64 vcc, 0
              s_cbranch_scc1 L_a_shift""")
        for ct in range(8): e(f"v_mov_b32 v{P+ct}, {hex(f2u(-3.0e38))}")
        e(f"s_mov_b32 s{sLOOP}, 16")
        a.label('L_a_mx_loop')
        e("s_waitcnt vmcnt(0)")
        b=KV[0]
        for ct in range(8):
            e(f"""v_mfma_f32_32x32x16_bf16 {vr(S1,16)}, {vr(b,4)}, {Q1(ct)}, 0
                  v_mfma_f32_32x32x8_bf16 {vr(S1,16)}, {vr(b+4,2)}, {Q2(ct)}, {vr(S1,16)}""")
            for i in range(8): e(f"v_max3_f32 v{P+ct}, v{S1+2*i}, v{S1+2*i+1}, v{P+ct}")
        kvload(0)
        e(f"""s_sub_u32 s{sLOOP}, s{sLOOP}, 1
              s_cmp_lg_u32 s{sLOOP}, 0
              s_cbranch_scc1 L_a_mx_loop
              s_waitcnt vmcnt(0)""")
        self.lds_spin(C_QL,4,10,vCNT)
        e(f"""s_lshl_b32 s{sA}, s{sW}, 11
              s_add_u32 s{sA}, s{sA}, {QF}
              v_lshlrev_b32 v8, 2, v{vL}
              v_add_u32 v9, s{sA}, v8
              v_add_u32 v8, {QF}, v8""")
        for ct in range(8):
            n=P+ct
            e(f"""v_mov_b32 v10, v{n}
                  v_permlane32_swap_b32 v10, v{n}
                  v_max_f32 v{n}, v{n}, v10
                  ds_write_b32 v9, v{n} offset:{256*ct}""")
        e("s_waitcnt lgkmcnt(0)")
        self.lds_inc(C_MX,10,vCNT)
        self.lds_spin(C_MX,4,10,vCNT)
        for ct in range(8):
            for w in range(4): e(f"ds_read_b32 v{S1+w}, v8 offset:{2048*w+256*ct}")
            e(f"""s_waitcnt lgkmcnt(0)
                  v_max3_f32 v{S0+ct}, v{S1}, v{S1+1}, v{S1+2}
                  v_max_f32 v{S0+ct}, v{S0+ct}, v{S1+3}""")
        e(f"""s_mov_b32 s{sK}, s{sQ}
              s_mov_b32 s{sV}, s{sR}""")
        kvload(0)
        a.label('L_a_shift')
        for ct in range(8):
            n=S0+ct; q2=Q+6*ct+4
            e(f"""v_sub_f32 v{n}, 0, v{n}
                  v_cvt_pk_bf16_f32 v8, v{n}, v{n}
                  v_lshlrev_b32 v8, 16, v8
                  v_sub_f32 v9, v{n}, v8
                  v_cvt_pk_bf16_f32 v10, v{n}, v9
                  v_and_b32 v8, 0xffff0000, v10
                  v_sub_f32 v9, v9, v8
                  v_cvt_pk_bf16_f32 v11, v9, 0
                  v_cndmask_b32 v{q2}, v10, v{q2}, s[{sHM}:{sHM+1}]
                  v_cndmask_b32 v{q2+1}, v11, v{q2+1}, s[{sHM}:{sHM+1}]""")
        for i in range(4): e(f"v_mov_b32 v{P+4+i}, 0")
        for i in range(4): e(f"v_mov_b32 v{KV[1]+10+i}, 0")
        e("s_waitcnt vmcnt(0)")
        b=KV[0]
        e(f"""v_mfma_f32_32x32x16_bf16 {vr(S0,16)}, {vr(b,4)}, {Q1(0)}, 0
              v_mfma_f32_32x32x8_bf16 {vr(S0,16)}, {vr(b+4,2)}, {Q2(0)}, {vr(S0,16)}
              s_mov_b32 s{sLOOP}, 8
              s_setprio {self.o.get('prioA',1)}
              s_nop 9""")
        self.stamp(6)
        e(".p2align 6")
        a.label('L_a_loop')
        for st in range(2):
            cur=KV[st]; oth=KV[st^1]
            for ct in range(8):
                S=S0 if ct%2==0 else S1; N=S1 if ct%2==0 else S0
                nct=(ct+1)%8; kb=cur if ct<7 else oth
                pct=(ct+7)%8; vb=cur if ct>0 else oth
                ex=lambda i: f"v_exp_f32 v{S+i}, v{S+i}"
                cv=lambda i: f"v_cvt_pk_bf16_f32 v{P+i}, v{S+2*i}, v{S+2*i+1}"
                qk1=f"v_mfma_f32_32x32x16_bf16 {vr(N,16)}, {vr(kb,4)}, {Q1(nct)}, 0"
                qk2=f"v_mfma_f32_32x32x8_bf16 {vr(N,16)}, {vr(kb+4,2)}, {Q2(nct)}, {vr(N,16)}"
                pvb=f"v_mfma_f32_32x32x16_bf16 {ar(16*pct,16)}, {vr(vb+10,4)}, {vr(P+4,4)}, {ar(16*pct,16)}"
                pva=f"v_mfma_f32_32x32x16_bf16 {ar(16*ct,16)}, {vr(cur+6,4)}, {vr(P,4)}, {ar(16*ct,16)}"
                if ct==7: e("s_waitcnt vmcnt(0)")
                for x in [qk1,ex(0),ex(1),ex(2),ex(3),cv(0),cv(1),qk2,ex(4),ex(5),ex(6),ex(7),cv(2),cv(3),pvb]: e(x)
                if ct==0: kvload(st^1)
                for x in [ex(8),ex(9),ex(10),ex(11),cv(4),cv(5),pva,ex(12),ex(13),ex(14),ex(15),cv(6),cv(7)]: e(x)
        e(f"""s_sub_u32 s{sLOOP}, s{sLOOP}, 1
              s_cmp_lg_u32 s{sLOOP}, 0
              s_cbranch_scc1 L_a_loop
              v_mfma_f32_32x32x16_bf16 {ar(112,16)}, {vr(KV[1]+10,4)}, {vr(P+4,4)}, {ar(112,16)}
              s_setprio 0
              s_waitcnt vmcnt(0)""")
        self.stamp(7)

    def o_reduce(self):
        e=self.e; a=self.a
        vL=6; vCNT=1
        e("; ---- O reduction ----")
        self.lds_spin(C_F2,4,8,vCNT)
        e(f"v_lshlrev_b32 v9, 4, v{vL}")
        for w in range(4):
            if w>0: a.label(f'L_a_ow{w}')
            if w==0:
                e(f"""s_cmp_eq_u32 s{sW}, 1
                      s_cbranch_scc1 L_a_ow1
                      s_cmp_eq_u32 s{sW}, 2
                      s_cbranch_scc1 L_a_ow2
                      s_cmp_eq_u32 s{sW}, 3
                      s_cbranch_scc1 L_a_ow3""")
            for d in range(4):
                if d==w: continue
                slot=w-(1 if w>d else 0)
                base=RED+(d*3+slot)*6144
                e(f"v_add_u32 v10, {base}, v9")
                for tt in range(2):
                    for q in range(3):
                        e(f"ds_write_b128 v10, {ar(16*(2*d+tt)+4*q,4)} offset:{(tt*3+q)*1024}")
            for tt in range(2):
                for i in range(12): e(f"v_accvgpr_read_b32 v{16+12*tt+i}, a{16*(2*w+tt)+i}")
            if w<3: e("s_branch L_a_ow_done")
        a.label('L_a_ow_done')
        e("s_waitcnt lgkmcnt(0)")
        self.lds_inc(C_OW,8,vCNT)
        self.lds_spin(C_OW,4,8,vCNT)
        self.stamp(8)
        e(f"""s_mul_i32 s{sA}, s{sW}, {3*6144}
              v_add_u32 v10, s{sA}, v9""")
        if RED: e(f"v_add_u32 v10, {RED}, v10")
        for slot in range(3):
            for k in range(6):
                e(f"ds_read_b128 {vr(40+4*k,4)}, v10 offset:{slot*6144+k*1024}")
            e("s_waitcnt lgkmcnt(0)")
            for i in range(0,24,2):
                e(f"v_pk_add_f32 v[{16+i}:{17+i}], v[{16+i}:{17+i}], v[{40+i}:{41+i}]")
        e(f"""s_lshl_b32 s{sB}, s{sT}, 1
              s_mul_i32 s{sB}, s{sB}, 40
              s_mul_i32 s{sC}, s{sJ}, 5
              s_add_u32 s{sB}, s{sB}, s{sC}
              s_lshl_b32 s{sB}, s{sB}, 10
              s_add_u32 s{sB}, s{sB}, {OF}
              s_lshl_b32 s{sC}, s{sW}, 10
              s_add_u32 s{sC}, s{sC}, s{sB}
              s_add_u32 s{sD}, s{sB}, 4096
              v_and_b32 v10, 31, v{vL}
              v_lshlrev_b32 v10, 4, v10
              s_and_b32 s{sE}, s{sW}, 1
              s_lshl_b32 s{sE}, s{sE}, 9
              s_lshr_b32 s{sF}, s{sW}, 1
              s_lshl_b32 s{sF}, s{sF}, 3
              s_add_u32 s{sE}, s{sE}, s{sF}
              v_add_u32 v10, s{sE}, v10
              v_cmp_gt_u32 vcc, 32, v{vL}
              v_mov_b32 v11, {hex(OOB)}
              v_cndmask_b32 v10, v11, v10, vcc""")
        for tt in range(2):
            b=16+12*tt
            e(f"""v_mov_b32 v12, v{b+8}
                  v_mov_b32 v13, v{b+8}
                  v_permlane32_swap_b32 v12, v13
                  v_rcp_f32 v13, v13
                  v_mov_b32 v12, v13""")
            for i in range(0,12,2): e(f"v_pk_mul_f32 v[{b+i}:{b+i+1}], v[{b+i}:{b+i+1}], v[12:13]")
            for i in range(6): e(f"v_cvt_pk_bf16_f32 v{b+i}, v{b+2*i}, v{b+2*i+1}")
            e(f"""buffer_store_dwordx4 {vr(b,4)}, v9, {srd(SRD_WS)}, s{sC} offen sc1
                  buffer_store_dwordx2 {vr(b+4,2)}, v10, {srd(SRD_WS)}, s{sD} offen sc1""")
            if tt==0: e(f"""s_add_u32 s{sC}, s{sC}, {40*1024}
                            s_add_u32 s{sD}, s{sD}, {40*1024}""")
        e("s_waitcnt vmcnt(0)")
        self.lds_inc(C_OS,8,vCNT,rtn=True)
        L=a.newlabel('Lno')
        e(f"""s_cmp_lg_u32 s{sA}, 3
              s_cbranch_scc1 {L}""")
        self.get_nonce(8,vCNT)
        e(f"""s_lshl_b32 s{sB}, s{sT}, 3
              s_add_u32 s{sB}, s{sB}, s{sJ}
              s_lshl_b32 s{sB}, s{sB}, 7
              s_add_u32 s{sB}, s{sB}, {OFLAG}""")
        self.flag_store(sB, 8)
        a.label(L)
        self.stamp(9)

    def role_f(self):
        e=self.e; a=self.a
        vL=6; vCNT=1
        vS1=7; vS2=14; vTR=15; vB0=62; vB1=63
        e(f"""; ---- role F: stream set-up ----
              s_sub_u32 s{sI}, s{sW}, 4
              s_mul_i32 s{sA}, s{sJ}, 7
              s_sub_u32 s{sB}, s{sJ}, 6
              s_mul_i32 s{sB}, s{sB}, 6
              s_add_u32 s{sB}, s{sB}, 42
              s_cmp_ge_u32 s{sJ}, 6
              s_cselect_b32 s{sA}, s{sB}, s{sA}
              s_cselect_b32 s{sP}, 4, 5
              s_add_u32 s{sCF1}, s{sA}, s{sI}
              s_lshr_b32 s{sB}, s{sI}, 1
              s_add_u32 s{sCF2}, s{sA}, s{sB}
              s_add_u32 s{sCF2}, s{sCF2}, 4
              s_and_b32 s{sTT}, s{sI}, 1
              s_mov_b32 s{SRD_S}, s{P_W1}
              s_mov_b32 s{SRD_S+1}, s{P_W1+1}
              s_mov_b32 s{SRD_S+2}, 2211840
              s_mov_b32 s{SRD_S+3}, 0x20000
              s_mov_b32 s{sC}, 3456
              s_mov_b32 s{sE}, 4
              s_mov_b32 s{sSTEP}, 55296
              s_sub_u32 s{sOFF}, 0, s{sSTEP}
              s_mul_i32 s{sRING}, s{sI}, {RING_F_SZ}
              s_add_u32 s{sRING}, s{sRING}, {RING_F}
              s_lshl_b32 s{sD}, s{sCF1}, 6""")
        self.stream_voff(vS1, vL, sC, sD, sE, 8)
        e(f"s_lshl_b32 s{sF}, s{sCF2}, 6")
        self.stream_voff(vS2, vL, sC, sF, sE, 8)
        adv=f"s_add_u32 s{sOFF}, s{sOFF}, s{sSTEP}"
        NS=NS_F
        self.tr_addr(vTR, vL, 8, sRING, 8)
        self.layernorm(0)
        e(f"""v_and_b32 v8, 31, v{vL}
              v_mul_u32_u24 v{vB0}, {XNS}, v8
              v_lshrrev_b32 v8, 5, v{vL}
              v_lshl_add_u32 v{vB0}, v8, 4, v{vB0}
              s_mul_i32 s{sA}, s{sTT}, {32*XNS}
              s_sub_u32 s{sB}, {32*XNS}, s{sA}
              v_add_u32 v{vB1}, s{sB}, v{vB0}
              v_add_u32 v{vB0}, s{sA}, v{vB0}""")
        L=a.newlabel('Lnn'); LP=a.newlabel('Lnp'); LD=a.newlabel('Lnd')
        e(f"""s_cmp_lg_u32 s{sW}, 4
              s_cbranch_scc1 {L}
              s_mov_b32 s{sSPIN}, {SPIN_MAX}
              v_mov_b32 v10, 0""")
        a.label(LP)
        e(f"""global_load_dwordx2 v[8:9], v10, s[{P_DBG}:{P_DBG+1}] sc1
              s_waitcnt vmcnt(0)
              v_readfirstlane_b32 s{sA}, v8
              s_cmp_lg_u32 s{sA}, 0
              s_cbranch_scc1 {LD}
              s_sleep 1
              s_sub_u32 s{sSPIN}, s{sSPIN}, 1
              s_cmp_lg_u32 s{sSPIN}, 0
              s_cbranch_scc1 {LP}""")
        a.label(LD)
        e(f"""s_mov_b64 exec, 1
              ds_write_b32 v{vCNT}, v9 offset:{C_NHI}
              s_waitcnt lgkmcnt(0)
              v_or_b32 v8, 1, v8
              ds_write_b32 v{vCNT}, v8 offset:{C_NLO}
              s_mov_b64 exec, -1""")
        a.label(L)
        D=64
        npf=0
        if self.o.get('pfF',1):
            npf=self.l2_prefetch_rows(SRD_S, sC, sD, vL, 8, 127)
            npf+=self.l2_prefetch_rows(SRD_S, sC, sF, vL, 8, 127)
        self.lds_spin(C_XA,4,8,vCNT)
        vm=Cnt(a,'vmcnt',63); lg=Cnt(a,'lgkmcnt',15)
        for i in range(npf): vm.issue(('pf',i))
        for s in range(NS):
            self.dma(SRD_S, vS1, sOFF, sRING, 2048*s, adv); vm.issue(('d',s))
            self.dma(SRD_S, vS2, sOFF, sRING, 2048*s+1024); vm.issue(('d',s))
        def reads(s):
            A=16+8*(s&1); B=32+8*(s&1); slot=(s%NS)*2048
            for st in range(2):
                e(f"ds_read_b64_tr_b16 v[{A+4*st}:{A+4*st+1}], v{vTR} offset:{slot+1024*st}"); lg.issue(('r',s))
                e(f"ds_read_b64_tr_b16 v[{A+4*st+2}:{A+4*st+3}], v{vTR} offset:{slot+1024*st+256}"); lg.issue(('r',s))
            e(f"ds_read_b128 {vr(B,4)}, v{vB0} offset:{32*s}"); lg.issue(('r',s))
            e(f"ds_read_b128 {vr(B+4,4)}, v{vB1} offset:{32*s}"); lg.issue(('r',s))
        vm.wait(('d',0)); reads(0)
        for s in range(40):
            if s+1<40:
                vm.wait(('d',s+1)); reads(s+1)
            lg.wait(('r',s))
            A=16+8*(s&1); B=32+8*(s&1)
            for (acc,Ar,Br) in ((0,A,B),(1,A,B+4),(2,A+4,B)):
                r=vr(D+16*acc,16); c=r if s>0 else '0'
                e(f"v_mfma_f32_32x32x16_bf16 {r}, {vr(Ar,4)}, {vr(Br,4)}, {c}")
            if s+NS<40:
                self.dma(SRD_S, vS1, sOFF, sRING, 2048*(s%NS), adv); vm.issue(('d',s+NS))
                self.dma(SRD_S, vS2, sOFF, sRING, 2048*(s%NS)+1024); vm.issue(('d',s+NS))
        e("s_waitcnt vmcnt(0)")
        self.stamp(3)
        self.lds_inc(C_X, 8, vCNT)
        e(f"s_setprio {self.o.get('prioFv',2)}")
        e(f"v_lshlrev_b32 v12, 4, v{vL}")
        for (acc,cf,flip) in ((0,sCF1,0),(1,sCF1,1),(2,sCF2,0)):
            e(f"""s_xor_b32 s{sA}, s{sTT}, {flip}
                  s_lshl_b32 s{sB}, s{sT}, 1
                  s_add_u32 s{sB}, s{sB}, s{sA}
                  s_mul_i32 s{sB}, s{sB}, 108
                  s_lshl_b32 s{sC}, s{cf}, 1
                  s_add_u32 s{sB}, s{sB}, s{sC}
                  s_lshl_b32 s{sB}, s{sB}, 10
                  s_add_u32 s{sB}, s{sB}, {HF}""")
            self.silu_store(D+16*acc, 16, 12, sB)
        self.publish_h(sP, 8, vCNT)
        e(f"s_setprio {self.o.get('prioFm',0)}")
        self.stamp(4)
        if self.stop=='s2': return
        self.ffn2()

    def ffn2(self):
        e=self.e; a=self.a
        vL=6; vCNT=1
        vW=[7,14,15]; vTR=13; vB=12
        ND=6
        e("; ---- FFN2 ----")
        self.mk_srd(SRD_W2,P_W2,2211840)
        self.mk_srd(SRD_WO,P_WO,819200)
        e(f"""s_mov_b32 s{sC}, 1280
              s_mul_i32 s{sD}, s{sJ}, 160
              s_mov_b32 s{sE}, 4""")
        self.stream_voff(vW[0], vL, sC, sD, sE, 8)
        e(f"""v_add_u32 v{vW[1]}, 64, v{vW[0]}
              s_add_u32 s{sD}, s{sD}, 128
              s_mov_b32 s{sE}, 2""")
        self.stream_voff(vW[2], vL, sC, sD, sE, 8)
        e(f"""s_mul_i32 s{sRING}, s{sI}, {F2RING_SZ}
              s_add_u32 s{sRING}, s{sRING}, {XN}
              s_mul_i32 s{sOFF}, s{sI}, {27*20480}
              s_sub_u32 s{sOFF}, s{sOFF}, 20480
              v_lshlrev_b32 v{vB}, 4, v{vL}""")
        self.tr_addr(vTR, vL, 4, sRING, 8)
        self.lds_spin(C_X,8,8,vCNT)
        adv=f"s_add_u32 s{sOFF}, s{sOFF}, 20480"
        vm=Cnt(a,'vmcnt',63); lg=Cnt(a,'lgkmcnt',15)
        def dmas(s):
            for c in range(3):
                self.dma(SRD_W2, vW[c], sOFF, sRING, (s%ND)*3072+1024*c, adv if c==0 else None); vm.issue(('d',s))
        for s in range(ND): dmas(s)
        L=a.newlabel('Lhw')
        e(f"""s_cmp_lg_u32 s{sW}, 4
              s_cbranch_scc1 {L}""")
        self.get_nonce(8,vCNT)
        e(f"""v_lshlrev_b32 v5, 7, v{vL}
              s_lshl_b32 s{sB}, s{sT}, 10
              s_add_u32 s{sB}, s{sB}, {HFLAG}""")
        self.flag_poll(5, 8, 8, sB)
        self.lds_set(C_HR, 1, 8, vCNT)
        a.label(L)
        self.lds_spin(C_HR,1,8,vCNT)
        self.stamp(5)
        e(f"""s_lshl_b32 s{sK}, s{sT}, 1
              s_mul_i32 s{sK}, s{sK}, 108
              s_mul_i32 s{sA}, s{sI}, 27
              s_add_u32 s{sK}, s{sK}, s{sA}
              s_lshl_b32 s{sK}, s{sK}, 10
              s_add_u32 s{sK}, s{sK}, {HF}
              s_add_u32 s{sV}, s{sK}, {108*1024}""")
        BB=64
        def bload(s):
            b=BB+8*(s%ND)
            e(f"""buffer_load_dwordx4 {vr(b,4)}, v{vB}, {srd(SRD_WS)}, s{sK} offen sc1
                  buffer_load_dwordx4 {vr(b+4,4)}, v{vB}, {srd(SRD_WS)}, s{sV} offen sc1
                  s_add_u32 s{sK}, s{sK}, 1024
                  s_add_u32 s{sV}, s{sV}, 1024""")
            vm.issue(('b',s)); vm.issue(('b',s))
        for s in range(ND): bload(s)
        def reads(s):
            A=16+12*(s&1); slot=(s%ND)*3072
            for c in range(3):
                e(f"ds_read_b64_tr_b16 v[{A+4*c}:{A+4*c+1}], v{vTR} offset:{slot+1024*c}"); lg.issue(('r',s))
                e(f"ds_read_b64_tr_b16 v[{A+4*c+2}:{A+4*c+3}], v{vTR} offset:{slot+1024*c+512}"); lg.issue(('r',s))
        vm.wait(('d',0)); reads(0)
        NST=27
        for s in range(NST):
            if s+1<NST:
                vm.wait(('d',s+1)); reads(s+1)
            lg.wait(('r',s)); vm.wait(('b',s))
            A=16+12*(s&1); B=BB+8*(s%ND)
            for c in range(3):
                for tt in range(2):
                    r=ar(16*(2*c+tt),16); cc=r if s>0 else '0'
                    e(f"v_mfma_f32_32x32x16_bf16 {r}, {vr(A+4*c,4)}, {vr(B+4*tt,4)}, {cc}")
            if s+ND<NST:
                dmas(s+ND); bload(s+ND)
        e("s_waitcnt vmcnt(0) lgkmcnt(0)")
        self.stamp(6)
        self.lds_inc(C_F2, 8, vCNT)
        if self.stop=='ffn2': return
        self.outproj()

    def outproj(self):
        e=self.e; a=self.a
        vL=6; vCNT=1
        vW=[7,14,15]; vTR=13; vB=12; vW4=[8,9,10]
        e(f"""s_mul_i32 s{sRING}, s{sI}, {RING_F_SZ}
              s_add_u32 s{sRING}, s{sRING}, {RING_F}""")
        self.tr_addr(vTR, vL, 4, sRING, 11)
        e(f"""v_lshrrev_b32 v11, 2, v{vL}
              v_and_b32 v5, 3, v11
              v_lshrrev_b32 v11, 2, v11
              v_and_b32 v4, 1, v11
              v_lshrrev_b32 v11, 1, v11
              v_lshl_add_u32 v4, v11, 1, v4
              v_mul_u32_u24 v4, 20, v4
              v_add3_u32 v4, v4, v5, 16
              v_lshrrev_b32 v11, 2, v{vL}
              v_sub_u32 v4, v4, v11
              v_mul_i32_i24 v4, 1280, v4""")
        for c in range(3):
            e(f"v_add_u32 v{vW4[c]}, v{vW[c]}, v4")
        def frag(k,c):
            idx=3*k+c
            if idx<22: return ('v',16+4*idx)
            return ('a',96+4*(idx-22))
        vm=Cnt(a,'vmcnt',63); lg=Cnt(a,'lgkmcnt',15)
        def rows(k):
            jj,sp=divmod(k,5)
            return jj*80 + (20*sp if sp<4 else 0), sp==4
        e(f"s_mul_i32 s{sOFF2}, s{sI}, {160*1280}")
        def dmas(k):
            r0,sp=rows(k)
            e(f"s_add_u32 s{sOFF}, s{sOFF2}, {r0*1280}")
            for c in range(3):
                self.dma(SRD_WO, (vW4 if sp else vW)[c], sOFF, sRING, (k%2)*3072+1024*c); vm.issue(('d',k))
        dmas(0); dmas(1)
        for k in range(10):
            vm.wait(('d',k))
            for c in range(3):
                t,r=frag(k,c)
                e(f"ds_read_b64_tr_b16 {t}[{r}:{r+1}], v{vTR} offset:{(k%2)*3072+1024*c}"); lg.issue(('r',k))
                e(f"ds_read_b64_tr_b16 {t}[{r+2}:{r+3}], v{vTR} offset:{(k%2)*3072+1024*c+512}"); lg.issue(('r',k))
            if k+2<10:
                lg.wait(('r',k)); dmas(k+2)
        e("s_waitcnt lgkmcnt(0)")
        self.stamp(7)
        L=a.newlabel('Low')
        e(f"""s_cmp_lg_u32 s{sW}, 4
              s_cbranch_scc1 {L}""")
        e(f"""v_lshlrev_b32 v5, 7, v{vL}
              s_lshl_b32 s{sB}, s{sT}, 10
              s_add_u32 s{sB}, s{sB}, {OFLAG}""")
        self.get_nonce(8,vCNT)
        self.flag_poll(5, 8, 8, sB)
        self.lds_set(C_OR, 1, 8, vCNT)
        a.label(L)
        self.lds_spin(C_OR,1,8,vCNT)
        self.stamp(8)
        e(f"""s_lshl_b32 s{sK}, s{sT}, 1
              s_mul_i32 s{sK}, s{sK}, 40
              s_mul_i32 s{sA}, s{sI}, 10
              s_add_u32 s{sK}, s{sK}, s{sA}
              s_lshl_b32 s{sK}, s{sK}, 10
              s_add_u32 s{sK}, s{sK}, {OF}
              s_add_u32 s{sV}, s{sK}, {40*1024}""")
        vm=Cnt(a,'vmcnt',63)
        BB=104; NB=3
        def bload(k):
            b=BB+8*(k%NB)
            e(f"""buffer_load_dwordx4 {vr(b,4)}, v{vB}, {srd(SRD_WS)}, s{sK} offen sc1
                  buffer_load_dwordx4 {vr(b+4,4)}, v{vB}, {srd(SRD_WS)}, s{sV} offen sc1
                  s_add_u32 s{sK}, s{sK}, 1024
                  s_add_u32 s{sV}, s{sV}, 1024""")
            vm.issue(('b',k)); vm.issue(('b',k))
        for k in range(NB): bload(k)
        for k in range(10):
            vm.wait(('b',k))
            B=BB+8*(k%NB)
            for c in range(3):
                t,r=frag(k,c)
                for tt in range(2):
                    acc=ar(16*(2*c+tt),16)
                    e(f"v_mfma_f32_32x32x16_bf16 {acc}, {t}[{r}:{r+3}], {vr(B+4*tt,4)}, {acc}")
            if k+NB<10: bload(k+NB)
        e(f"""v_and_b32 v8, 31, v{vL}
              v_mul_u32_u24 v9, {PSTR}, v8
              v_lshrrev_b32 v8, 5, v{vL}
              v_lshl_add_u32 v9, v8, 4, v9
              s_mul_i32 s{sA}, s{sI}, {PSZ}
              v_add_u32 v9, s{sA}, v9""")
        if RED: e(f"v_add_u32 v9, {RED}, v9")
        for c in range(3):
            for tt in range(2):
                for rq in range(4 if c<2 else 2):
                    e(f"ds_write_b128 v9, {ar(16*(2*c+tt)+4*rq,4)} offset:{tt*32*PSTR+(8*c+2*rq)*16}")
        e("s_waitcnt lgkmcnt(0)")
        self.stamp(9)

    def final(self):
        e=self.e; a=self.a
        self.mk_srd(SRD_OUT,P_OUT,2621440)
        e("; ---- final ----")
        def item(vit, first):
            e(f"""v_mul_u32_u24 v8, 6554, v{vit}
                  v_lshrrev_b32 v8, 16, v8
                  v_mul_u32_u24 v9, 10, v8
                  v_sub_u32 v9, v{vit}, v9
                  s_lshl_b32 s{sA}, s{sT}, 6
                  v_add_u32 v10, s{sA}, v8
                  v_mul_u32_u24 v10, 1280, v10
                  v_lshl_add_u32 v10, v9, 4, v10
                  s_mul_i32 s{sA}, s{sJ}, 160
                  v_add_u32 v10, s{sA}, v10
                  buffer_load_dwordx4 v[12:15], v10, {srd(SRD_X)}, 0 offen
                  v_mul_u32_u24 v11, {PSTR}, v8
                  v_lshl_add_u32 v11, v9, 5, v11""")
            if RED: e(f"v_add_u32 v11, {RED}, v11")
            if first:
                e("s_barrier")
                self.stamp(10)
            for f in range(4):
                off=f*PSZ
                if off+16>65535:
                    e(f"v_add_u32 v7, {off}, v11")
                    e(f"ds_read_b128 {vr(16+8*f,4)}, v7\nds_read_b128 {vr(20+8*f,4)}, v7 offset:16")
                else:
                    e(f"ds_read_b128 {vr(16+8*f,4)}, v11 offset:{off}\nds_read_b128 {vr(20+8*f,4)}, v11 offset:{off+16}")
            e("s_waitcnt lgkmcnt(0)")
            for i in range(0,8,2):
                e(f"""v_pk_add_f32 v[{16+i}:{17+i}], v[{16+i}:{17+i}], v[{24+i}:{25+i}]
                      v_pk_add_f32 v[{32+i}:{33+i}], v[{32+i}:{33+i}], v[{40+i}:{41+i}]
                      v_pk_add_f32 v[{16+i}:{17+i}], v[{16+i}:{17+i}], v[{32+i}:{33+i}]""")
            e(f"""s_waitcnt vmcnt(0)
                  s_mov_b32 s{sB}, {hex(f2u(LN2))}""")
            for i in range(4):
                e(f"""v_lshlrev_b32 v48, 16, v{12+i}
                      v_and_b32 v49, 0xffff0000, v{12+i}
                      v_fma_f32 v48, v{16+2*i}, s{sB}, v48
                      v_fma_f32 v49, v{17+2*i}, s{sB}, v49
                      v_cvt_pk_bf16_f32 v{12+i}, v48, v49""")
            e(f"buffer_store_dwordx4 v[12:15], v10, {srd(SRD_OUT)}, 0 offen")
        item(0, True)
        e(f"""s_cmp_ge_u32 s{sW}, 2
              s_cbranch_scc1 L_fin
              v_add_u32 v2, 512, v0""")
        item(2, False)
        a.label('L_fin')
        if self.o.get('prof'):
            e("s_waitcnt vmcnt(0)")
            self.stamp(11)
            self.dump_stamps()

    def build(self):
        a=self.a; e=self.e
        self.prologue()
        e(f"""s_cmp_ge_u32 s{sW}, 4
              s_cbranch_scc1 L_role_f""")
        self.role_a()
        if self.stop=='s2':
            self.dump_q()
        else:
            self.attention()
            self.o_reduce()
        e("s_branch L_join")
        a.label('L_role_f')
        self.role_f()
        a.label('L_join')
        if self.stop is None:
            self.final()
        a.label('L_exit')
        e("s_endpgm")
        lines,n=fix_hazards(a.L)
        return lines,n
    def dump_q(self):
        e=self.e
        self.lds_spin(C_Q,3,8,1)
        e(f"""v_lshlrev_b32 v9, 4, v6
              s_lshl_b32 s{sA}, s{sW}, 12
              v_add_u32 v9, s{sA}, v9
              v_add_u32 v10, {QF}, v9
              s_lshl_b32 s{sB}, s{sT}, 3
              s_add_u32 s{sB}, s{sB}, s{sJ}
              s_lshl_b32 s{sB}, s{sB}, 14
              s_add_u32 s{sB}, s{sB}, 0x1000000""")
        for i in range(4):
            e(f"""ds_read_b128 v[16:19], v10 offset:{1024*i}
                  s_waitcnt lgkmcnt(0)
                  buffer_store_dwordx4 v[16:19], v9, {srd(SRD_WS)}, s{sB} offen offset:{1024*i}
                  s_waitcnt vmcnt(0)""")

HEADER='''; Fused LayerNorm + MQA attention + SiLU FFN + residual, one persistent launch (256 workgroups, one per CU).
; Kernarg layout (88 bytes, ptrs only): A_x, A_wq, A_wk, A_wv, A_wo, B_x, B_w1, B_w2, d_out, d_debug, d_ws
; @launch grid=(256,1,1) block=(512,1,1) lds=%d
.amdgcn_target "amdgcn-amd-amdhsa--gfx950"
.text
.globl %s
.p2align 8
.type %s,@function
%s:
''' % (LDS_TOTAL,KNAME,KNAME,KNAME)
FOOTER='''
.section .rodata,"a"
.p2align 6
.amdhsa_kernel %s
  .amdhsa_next_free_vgpr 256
  .amdhsa_next_free_sgpr 102
  .amdhsa_accum_offset 128
  .amdhsa_group_segment_fixed_size 0
  .amdhsa_kernarg_size 88
  .amdhsa_user_sgpr_count 2
  .amdhsa_user_sgpr_kernarg_segment_ptr 1
  .amdhsa_system_sgpr_workgroup_id_x 1
.end_amdhsa_kernel
''' % KNAME

def generate(path, stop=None, opts=None):
    global WS_SIZE
    if stop=='s2': WS_SIZE=0x2000000
    g=G(stop,opts)
    lines,n=g.build()
    open(path,'w').write(HEADER+"\n".join(lines)+FOOTER)
    print("generated",path,len(lines),"lines; nops inserted:",n)

if __name__=="__main__":
    stop=None; path="parallel_sum__grouped_kv_mqa__dense_activation_silu__prompt.s"
    opts={}
    for x in sys.argv[1:]:
        if x.startswith("stop="): stop=x[5:]
        elif x.startswith("out="): path=x[4:]
        else:
            k,v=x.split("="); opts[k]=float(v) if '.' in v else int(v)
    generate(path,stop,opts)
```

```python
import sys, math, struct
from asmlib import Asm, Cnt, fix_hazards

KNAME="parallel_sum__grouped_kv_mqa__dense_activation_silu__prompt_kernel"
def f2u(x): return struct.unpack('<I',struct.pack('<f',x))[0]
LOG2E=1.4426950408889634; LN2=0.6931471805599453
XN=0; XNS=1296
RED=0
PSTR=336; PSZ=64*PSTR
QF=86016
RINGS=102400
NS_A=14; RING_A=RINGS; RING_A_SZ=NS_A*1024
NS_F=7;  RING_F=RINGS; RING_F_SZ=NS_F*2048
CNT=163712
RINGQ=112640; QCH=6144; QN=8
C_Q=0; C_H=4; C_NLO=8; C_NHI=12; C_KV=16; C_KMAX=20; C_HR=24; C_OW=28; C_OS=32; C_OR=36; C_X=40; C_F2=44; C_MX=48; C_XA=52; C_QL=56; C_ST=60; C_KW=64; C_LS=68; C_OP=72
ST=82944; CS=83456
LDS_TOTAL=163840
F2ND=5; F2RING_SZ=F2ND*3072
def ored(idx): return 102400+idx*6144 if idx<9 else 67584+(idx-9)*6144
KF=0; VF=0x20000; KVFLAG=0x40000; HFLAG=0x48000; OFLAG=0x50000; DBG=0x60000
OF=0x100000; HF=0x400000; WS_SIZE=0xB00000
OOB=0x80000000
sT=4; sJ=5; sW=6
P_X=8; P_WQ=10; P_WK=12; P_WV=14; P_WO=16; P_W1=20; P_W2=22; P_OUT=24; P_DBG=26; P_WS=28
SRD_X=32; SRD_S=36; SRD_W2=40; SRD_WO=44; SRD_WS=48; SRD_OUT=52
sOFF=56; sSTEP=57; sOFF2=58; sRING=59; sNLO=60; sNHI=61
sA=62; sB=63; sC=64; sD=65; sE=66; sF=67; sG=68; sH=69
sONES=70; sSPIN=71; sM=72
sHM=86; sK=76; sV=77; sLOOP=78; sCF1=79; sCF2=80; sTT=81; sP=82; sI=83; sQ=84; sR=85
def srd(n): return f"s[{n}:{n+3}]"
def vr(a,n=1): return f"v{a}" if n==1 else f"v[{a}:{a+n-1}]"
def ar(a,n=1): return f"a{a}" if n==1 else f"a[{a}:{a+n-1}]"

STOP=None
SPIN_MAX=400000

class G:
    def __init__(self, stop=None, opts=None):
        self.a=Asm(); self.stop=stop; self.o=opts or {}
    def e(self,s): self.a.e(s)
    def NT(self,k): return " nt" if self.o.get(k,{'ntX':0}.get(k,0)) else ""
    def mk_srd(self,dst,ptr,size):
        self.e(f"""s_mov_b32 s{dst}, s{ptr}
                   s_mov_b32 s{dst+1}, s{ptr+1}
                   s_mov_b32 s{dst+2}, {size}
                   s_mov_b32 s{dst+3}, 0x20000""")
    def lds_spin(self, off, val, vtmp, vcnt, sleep=None):
        L=self.a.newlabel('Lspin'); D=self.a.newlabel('Lspd')
        self.e(f"s_mov_b32 s{sSPIN}, {SPIN_MAX}")
        self.a.label(L)
        self.e(f"""ds_read_b32 v{vtmp}, v{vcnt} offset:{off}
                   s_waitcnt lgkmcnt(0)
                   v_readfirstlane_b32 s{sA}, v{vtmp}
                   s_cmp_ge_u32 s{sA}, {val}
                   s_cbranch_scc1 {D}
                   s_sleep {sleep or self.o.get('slp',1)}
                   s_sub_u32 s{sSPIN}, s{sSPIN}, 1
                   s_cmp_lg_u32 s{sSPIN}, 0
                   s_cbranch_scc1 {L}""")
        self.a.label(D)
    def lds_inc(self, off, vtmp, vcnt, rtn=False):
        self.e(f"""s_mov_b64 exec, 1
                   v_mov_b32 v{vtmp}, 1""")
        if rtn:
            self.e(f"""ds_add_rtn_u32 v{vtmp}, v{vcnt}, v{vtmp} offset:{off}
                       s_waitcnt lgkmcnt(0)
                       v_readfirstlane_b32 s{sA}, v{vtmp}""")
        else:
            self.e(f"ds_add_u32 v{vcnt}, v{vtmp} offset:{off}")
        self.e("s_mov_b64 exec, -1")
    def get_nonce(self, vtmp, vcnt):
        self.lds_spin(C_NLO,1,vtmp,vcnt)
        self.e(f"""ds_read_b64 v[{vtmp}:{vtmp+1}], v{vcnt} offset:{C_NLO}
                   s_waitcnt lgkmcnt(0)
                   v_readfirstlane_b32 s{sNLO}, v{vtmp}
                   v_readfirstlane_b32 s{sNHI}, v{vtmp+1}""")
    def flag_store(self, soff_sreg, vtmp, payload=None):
        self.e(f"""s_mov_b64 exec, 1
                   v_mov_b32 v{vtmp}, s{sNLO}
                   v_mov_b32 v{vtmp+1}, s{sNHI}
                   v_mov_b32 v{vtmp+2}, {('s%d'%payload) if payload is not None else 0}
                   v_mov_b32 v{vtmp+3}, 0
                   v_mov_b32 v{vtmp+4}, 0
                   buffer_store_dwordx4 v[{vtmp}:{vtmp+3}], v{vtmp+4}, {srd(SRD_WS)}, s{soff_sreg} offen sc1
                   s_mov_b64 exec, -1""")
    def flag_poll(self, voff, vtmp, nl, soff_sreg):
        L=self.a.newlabel('Lpoll'); D=self.a.newlabel('Lpd')
        mask=(1<<nl)-1
        self.e(f"""s_mov_b32 s{sSPIN}, {SPIN_MAX}
                   s_mov_b32 s{sM}, {mask & 0xffffffff}
                   s_mov_b32 s{sM+1}, {mask>>32}
                   s_mov_b64 exec, s[{sM}:{sM+1}]""")
        self.a.label(L)
        self.e(f"""buffer_load_dwordx4 v[{vtmp}:{vtmp+3}], v{voff}, {srd(SRD_WS)}, s{soff_sreg} offen sc1
                   s_waitcnt vmcnt(0)
                   v_cmp_ne_u32 vcc, s{sNLO}, v{vtmp}
                   v_cmp_ne_u32 s[{sM+2}:{sM+3}], s{sNHI}, v{vtmp+1}
                   s_or_b64 vcc, vcc, s[{sM+2}:{sM+3}]
                   s_cmp_eq_u64 vcc, 0
                   s_cbranch_scc1 {D}
                   s_sleep 1
                   s_sub_u32 s{sSPIN}, s{sSPIN}, 1
                   s_cmp_lg_u32 s{sSPIN}, 0
                   s_cbranch_scc1 {L}""")
        self.a.label(D)
        self.e("s_mov_b64 exec, -1")
    def lds_set(self, off, src, vtmp, vcnt):
        self.e(f"""v_mov_b32 v{vtmp}, {src}
                   s_mov_b64 exec, 1
                   ds_write_b32 v{vcnt}, v{vtmp} offset:{off}
                   s_mov_b64 exec, -1""")

    def weave(self, mfmas, fillers, toggle=False):
        n=len(mfmas); k=len(fillers); idx=0
        for i,m in enumerate(mfmas):
            if toggle: self.e(f"s_setprio {self.o.get('prioFm',0)}")
            self.e(m)
            if toggle: self.e(f"s_setprio {self.o.get('prioFl',3)}")
            upto=((i+1)*k+n-1)//n
            while idx<upto:
                fillers[idx](); idx+=1
    def stamp(self,i):
        if not self.o.get('prof'): return
        assert i<12
        op='s_memrealtime' if self.o.get('rt') else 's_memtime'
        self.e(f"""{op} s[100:101]
                   s_waitcnt lgkmcnt(0)
                   s_mov_b32 s{88+i}, s100""")
    def dump_stamps(self):
        if not self.o.get('prof'): return
        e=self.e
        e(f"""s_memrealtime s[100:101]
              s_waitcnt lgkmcnt(0)
              s_lshl_b32 s{sA}, s2, 3
              s_add_u32 s{sA}, s{sA}, s{sW}
              s_lshl_b32 s{sA}, s{sA}, 6
              s_add_u32 s{sA}, s{sA}, {DBG}
              s_mov_b64 exec, 1
              v_mov_b32 v8, 0""")
        for i in range(0,12,4):
            for k in range(4): e(f"v_mov_b32 v{12+k}, s{88+i+k}")
            e(f"buffer_store_dwordx4 v[12:15], v8, {srd(SRD_WS)}, s{sA} offen offset:{4*i}\ns_waitcnt vmcnt(0)")
        e(f"""v_mov_b32 v12, s18
              v_mov_b32 v13, s100
              s_getreg_b32 s{sB}, hwreg(HW_REG_XCC_ID)
              v_mov_b32 v14, s{sB}
              s_getreg_b32 s{sB}, hwreg(HW_REG_HW_ID)
              v_mov_b32 v15, s{sB}
              buffer_store_dwordx4 v[12:15], v8, {srd(SRD_WS)}, s{sA} offen offset:48
              s_waitcnt vmcnt(0)
              s_mov_b64 exec, -1""")

    def prologue(self):
        e=self.e
        e(f"""s_cmp_ge_u32 s2, 256
              s_cbranch_scc1 L_exit
              s_getpc_b64 s[30:31]
            L_pc0:
              s_load_dwordx16 s[8:23], s[0:1], 0
              s_load_dwordx4 s[24:27], s[0:1], 64
              s_load_dwordx2 s[28:29], s[0:1], 80
              s_and_b32 s3, s2, 7
              s_lshl_b32 s3, s3, 2
              s_lshr_b32 s{sT}, s2, 6
              s_add_u32 s{sT}, s{sT}, s3
              s_lshr_b32 s{sJ}, s2, 3
              s_and_b32 s{sJ}, s{sJ}, 7
              v_lshrrev_b32 v1, 6, v0
              v_lshrrev_b32 v2, 3, v0
              v_and_b32 v3, 7, v0
              v_readfirstlane_b32 s{sW}, v1
              s_lshl_b32 s3, s{sT}, 6
              v_add_u32 v4, s3, v2
              v_mul_u32_u24 v4, 1280, v4
              v_lshl_add_u32 v4, v3, 4, v4
              v_and_b32 v6, 63, v0
              s_waitcnt lgkmcnt(0)""")
        if self.o.get('prof'):
            e("s_memrealtime s[100:101]\ns_waitcnt lgkmcnt(0)\ns_mov_b32 s18, s100")
        self.stamp(0)
        if self.o.get('pfI',1):
            L=self.a.newlabel('Lpfi')
            e(f"""s_cmp_lg_u32 s{sW}, 7
                  s_cbranch_scc1 {L}
                  s_lshr_b32 s3, s2, 3
                  s_lshl_b32 s3, s3, 4
                  v_add_u32 v7, s3, v6
                  v_lshlrev_b32 v7, 7, v7
                  v_min_u32 v7, L_exit-L_pc0, v7
                  v_cmp_gt_u32 vcc, 16, v6
                  s_and_saveexec_b64 s[{sM}:{sM+1}], vcc
                  global_load_dword v126, v7, s[30:31]
                  s_mov_b64 exec, -1""")
            self.a.label(L)
        if self.o.get('pfQ1',0):
            L=self.a.newlabel('Lpfq')
            e(f"""s_cmp_lt_u32 s{sW}, 4
                  s_cbranch_scc1 {L}
                  s_sub_u32 s{sI}, s{sW}, 4""")
            self.mk_srd(SRD_W2,P_WQ,819200)
            self.l2_prefetch_flat(SRD_W2, 819200, 6, 8, 127, sI, 4, ntk='ntQ')
            self.a.label(L)
        if self.o.get('pfQe',0):
            L=self.a.newlabel('Lpfe')
            e(f"""s_cmp_lg_u32 s{sW}, 6
                  s_cbranch_scc1 {L}""")
            self.mk_srd(SRD_W2,P_WQ,819200)
            e(f"""s_lshr_b32 s3, s2, 3
                  s_mul_i32 s3, s3, {40*128}
                  v_lshlrev_b32 v7, 7, v6
                  v_mov_b32 v8, {hex(OOB)}
                  v_cmp_gt_u32 vcc, 40, v6
                  v_cndmask_b32 v7, v8, v7, vcc
                  buffer_load_dword v125, v7, {srd(SRD_W2)}, s3 offen{self.NT('ntQ')}""")
            self.a.label(L)
        self.mk_srd(SRD_X,P_X,2621440)
        for i in range(10):
            e(f"buffer_load_dwordx4 v[{16+4*i}:{19+4*i}], v4, {srd(SRD_X)}, 0 offen offset:{128*i}{self.NT('ntX')}")
        if self.o.get('bar0',0): e("s_barrier")
        e(f"""v_mul_u32_u24 v5, {XNS}, v2
              v_lshl_add_u32 v5, v3, 4, v5
              v_mov_b32 v1, {CNT}
              s_mov_b32 s{sONES}, 0x3f803f80""")
        self.mk_srd(SRD_WS,P_WS,WS_SIZE)
        L=self.a.newlabel('Lw0')
        e(f"""s_cmp_lg_u32 s{sW}, 0
              s_cbranch_scc1 {L}
              v_mov_b32 v8, 0
              v_lshl_add_u32 v9, v6, 2, v1
              v_cmp_gt_u32 vcc, 32, v6
              s_and_saveexec_b64 s[{sM}:{sM+1}], vcc
              ds_write_b32 v9, v8
              s_mov_b64 exec, -1
              s_cmp_lg_u32 s2, 0
              s_cbranch_scc1 {L}
              s_memrealtime s[{sM}:{sM+1}]
              s_waitcnt lgkmcnt(0)
              s_or_b32 s{sM}, s{sM}, 1
              s_mov_b64 exec, 1
              v_mov_b32 v8, s{sM}
              v_mov_b32 v9, s{sM+1}
              v_mov_b32 v10, 0
              global_store_dwordx2 v10, v[8:9], s[{P_DBG}:{P_DBG+1}] sc1
              s_mov_b64 exec, -1""")
        self.a.label(L)

    def layernorm(self, extra=None, pre_barrier=None, prog=None):
        e=self.e
        self.stamp(1)
        e("v_mov_b32 v8, 0\nv_mov_b32 v9, 0\nv_mov_b32 v10, 0\nv_mov_b32 v11, 0")
        extra=list(extra or [])
        for r in range(40):
            if prog is not None and r%4==0: e(f"s_waitcnt vmcnt({prog+9-r//4})")
            e(f"v_dot2_f32_bf16 v{8+(r&1)}, v{16+r}, s{sONES}, v{8+(r&1)}")
            e(f"v_dot2_f32_bf16 v{10+(r&1)}, v{16+r}, v{16+r}, v{10+(r&1)}")
            if extra and r%3==2 and self.o.get('xstats',0): extra.pop(0)()
        e("v_add_f32 v8, v8, v9\nv_add_f32 v10, v10, v11")
        for m in ("quad_perm:[1,0,3,2]","quad_perm:[2,3,0,1]","row_half_mirror"):
            e(f"v_add_f32_dpp v8, v8, v8 {m} row_mask:0xf bank_mask:0xf")
            e(f"v_add_f32_dpp v10, v10, v10 {m} row_mask:0xf bank_mask:0xf")
        e(f"""v_mul_f32 v8, {hex(f2u(1/640))}, v8
              v_mul_f32 v10, {hex(f2u(1/640))}, v10
              v_fma_f32 v10, -v8, v8, v10
              v_max_f32 v10, 0, v10
              v_add_f32 v10, {hex(f2u(1e-5))}, v10
              v_rsq_f32 v10, v10
              v_mul_f32 v10, {hex(f2u(LOG2E))}, v10
              v_mul_f32 v12, v8, v10
              v_sub_f32 v12, 0, v12
              v_mov_b32 v11, v10
              v_mov_b32 v13, v12""")
        for i in range(10):
            for k in range(4):
                r=16+4*i+k
                t=56+ 2*((4*i+k)%4)
                e(f"""v_lshlrev_b32 v{t}, 16, v{r}
                      v_and_b32 v{t+1}, 0xffff0000, v{r}
                      v_pk_fma_f32 v[{t}:{t+1}], v[{t}:{t+1}], v[10:11], v[12:13]
                      v_cvt_pk_bf16_f32 v{r}, v{t}, v{t+1}""")
            e(f"ds_write_b128 v5, v[{16+4*i}:{19+4*i}] offset:{128*i}")
            if extra: extra.pop(0)()
        while extra: extra.pop(0)()
        if pre_barrier: e(pre_barrier)
        e("s_waitcnt lgkmcnt(0)\ns_barrier")
        self.stamp(2)

    def dma(self, srd_n, voff, soff_s, lds_base_s, lds_imm, mid=None, ntk='ntW'):
        self.e(f"s_add_u32 m0, s{lds_base_s}, {lds_imm}")
        if mid: self.e(mid)
        self.e(f"buffer_load_dwordx4 v{voff}, {srd(srd_n)}, s{soff_s} offen{self.NT(ntk)} lds")
    def stream_voff(self, vdst, vlane, s_rowstride, s_colbyte, s_npieces, vt):
        self.e(f"""v_lshrrev_b32 v{vt}, 2, v{vlane}
                   v_mul_lo_u32 v{vdst}, s{s_rowstride}, v{vt}
                   v_and_b32 v{vt}, 3, v{vlane}
                   v_lshl_add_u32 v{vdst}, v{vt}, 4, v{vdst}
                   v_add_u32 v{vdst}, s{s_colbyte}, v{vdst}
                   v_cmp_gt_u32 vcc, s{s_npieces}, v{vt}
                   v_mov_b32 v{vt}, {hex(OOB)}
                   v_cndmask_b32 v{vdst}, v{vt}, v{vdst}, vcc""")
    def tr_addr(self, vdst, vlane, hstride_rows, s_base, vt):
        self.e(f"""v_lshrrev_b32 v{vdst}, 5, v{vlane}
                   v_mul_u32_u24 v{vdst}, {hstride_rows*64}, v{vdst}
                   v_bfe_u32 v{vt}, v{vlane}, 2, 2
                   v_lshl_add_u32 v{vdst}, v{vt}, 6, v{vdst}
                   v_bfe_u32 v{vt}, v{vlane}, 4, 1
                   v_lshl_add_u32 v{vdst}, v{vt}, 5, v{vdst}
                   v_and_b32 v{vt}, 3, v{vlane}
                   v_lshl_add_u32 v{vdst}, v{vt}, 3, v{vdst}
                   v_add_u32 v{vdst}, s{s_base}, v{vdst}""")
    def w192_voff(self, vdst, i, vlane, special, t0, t1):
        e=self.e
        first=f"{64*i}" if isinstance(i,int) else i
        e(f"""v_add_u32 v{t0}, {first}, v{vlane}
              v_mul_u32_u24 v{vdst}, 5462, v{t0}
              v_lshrrev_b32 v{vdst}, 16, v{vdst}
              v_mul_u32_u24 v{t1}, 12, v{vdst}
              v_sub_u32 v{t0}, v{t0}, v{t1}""")
        if special:
            e(f"""v_lshrrev_b32 v{t1}, 2, v{vdst}
                  v_and_b32 v{vdst}, 3, v{vdst}
                  v_and_b32 v{t1+1}, 1, v{t1}
                  v_lshrrev_b32 v{t1}, 1, v{t1}
                  v_lshl_add_u32 v{t1}, v{t1}, 1, v{t1+1}
                  v_mul_u32_u24 v{t1}, 20, v{t1}
                  v_add3_u32 v{vdst}, v{vdst}, v{t1}, 16""")
        e(f"""v_mul_u32_u24 v{vdst}, 1280, v{vdst}
              v_lshl_add_u32 v{vdst}, v{t0}, 4, v{vdst}
              s_mul_i32 s{sA}, s{sJ}, 160
              v_add_u32 v{vdst}, s{sA}, v{vdst}
              v_cmp_gt_u32 vcc, 10, v{t0}
              v_mov_b32 v{t1}, {hex(OOB)}
              v_cndmask_b32 v{vdst}, v{t1}, v{vdst}, vcc""")
    def tr192_addr(self, vdst, vlane, s_base, vt):
        self.e(f"""v_lshrrev_b32 v{vdst}, 5, v{vlane}
                   v_lshlrev_b32 v{vdst}, 2, v{vdst}
                   v_bfe_u32 v{vt}, v{vlane}, 2, 2
                   v_add_u32 v{vdst}, v{vdst}, v{vt}
                   v_mul_u32_u24 v{vdst}, 192, v{vdst}
                   v_bfe_u32 v{vt}, v{vlane}, 4, 1
                   v_lshl_add_u32 v{vdst}, v{vt}, 5, v{vdst}
                   v_and_b32 v{vt}, 3, v{vlane}
                   v_lshl_add_u32 v{vdst}, v{vt}, 3, v{vdst}
                   v_add_u32 v{vdst}, s{s_base}, v{vdst}""")
    def l2_prefetch_rows(self, srd_n, s_rowstride, s_colbyte, vlane, vt, vdummy, nins=3, row0=0, rstep=160):
        self.e(f"""s_and_b32 s{sA}, s{sT}, 3
                   s_mul_i32 s{sA}, s{sA}, {rstep}
                   s_add_u32 s{sA}, s{sA}, {row0}
                   v_add_u32 v{vt}, s{sA}, v{vlane}
                   v_mul_lo_u32 v{vt}, s{s_rowstride}, v{vt}
                   v_add_u32 v{vt}, s{s_colbyte}, v{vt}
                   s_lshl_b32 s{sA}, s{s_rowstride}, 6
                   s_mov_b32 s{sB}, 0""")
        for i in range(nins):
            self.e(f"buffer_load_dword v{vdummy}, v{vt}, {srd(srd_n)}, s{sB} offen{self.NT('ntP')}")
            if i+1<nins: self.e(f"s_add_u32 s{sB}, s{sB}, s{sA}")
        return nins

    def l2_prefetch_flat(self, srd_n, nbytes, vlane, vt, vdummy, part, nparts, r0=0, r1=None, ntk='ntP', midx=None, nwg=32, pace=0):
        lines=(nbytes+127)//128
        per_round=nwg*nparts*64
        nr=(lines+per_round-1)//per_round
        if r1 is None: r1=nr
        r1=min(r1,nr)
        self.e(f"s_lshr_b32 s{sA}, s2, 3" if midx is None else f"s_mov_b32 s{sA}, s{midx}")
        self.e(f"""s_mul_i32 s{sA}, s{sA}, {nparts}
                   s_add_u32 s{sA}, s{sA}, s{part}
                   s_lshl_b32 s{sA}, s{sA}, 13
                   v_lshlrev_b32 v{vt}, 7, v{vlane}""")
        if r0: self.e(f"s_add_u32 s{sA}, s{sA}, {r0*per_round*128}")
        for r in range(r0,r1):
            self.e(f"buffer_load_dword {vdummy if isinstance(vdummy,str) else 'v%d'%vdummy}, v{vt}, {srd(srd_n)}, s{sA} offen{self.NT(ntk)}")
            if pace and (r-r0)%pace==pace-1: self.e("s_waitcnt vmcnt(0)")
            if r+1<r1: self.e(f"s_add_u32 s{sA}, s{sA}, {per_round*128}")
        return r1-r0

    def silu_store(self, D, T, voff, soff_s):
        e=self.e
        for half in range(2):
            b=D+8*half
            for i in range(8): e(f"v_exp_f32 v{T+i}, -v{b+i}")
            for i in range(0,8,2): e(f"v_pk_add_f32 v[{T+i}:{T+i+1}], v[{T+i}:{T+i+1}], 1.0 op_sel_hi:[1,0]")
            for i in range(8): e(f"v_rcp_f32 v{T+i}, v{T+i}")
            for i in range(0,8,2): e(f"v_pk_mul_f32 v[{b+i}:{b+i+1}], v[{b+i}:{b+i+1}], v[{T+i}:{T+i+1}]")
            for i in range(4): e(f"v_cvt_pk_bf16_f32 v{b+i}, v{b+2*i}, v{b+2*i+1}")
            e(f"buffer_store_dwordx4 v[{b}:{b+3}], v{voff}, {srd(SRD_WS)}, s{soff_s} offen offset:{1024*half} sc1")

    def kv_publish(self, soff_s, payload, vcnt):
        e=self.e; a=self.a
        if not self.o.get('kvfast',1):
            e("s_waitcnt vmcnt(0)")
            self.flag_store(soff_s, 8, payload=payload)
            self.lds_inc(C_KW, 8, vcnt)
            return
        e(f"s_mov_b32 s{sH}, 0")
        for p in range(10):
            L=a.newlabel('Lkvp')
            e(f"""s_cmp_lg_u32 s{sH}, 0
                  s_cbranch_scc1 {L}
                  s_getreg_b32 s{sG}, hwreg(HW_REG_IB_STS, 0, 4)
                  s_cmp_lg_u32 s{sG}, 0
                  s_cbranch_scc1 {L}
                  s_waitcnt vmcnt(0)""")
            self.flag_store(soff_s, 8, payload=payload)
            e(f"s_mov_b32 s{sH}, 1")
            a.label(L)
            e("s_barrier")
        L=a.newlabel('Lkvp')
        e(f"""s_cmp_lg_u32 s{sH}, 0
              s_cbranch_scc1 {L}
              s_waitcnt vmcnt(0)""")
        self.flag_store(soff_s, 8, payload=payload)
        a.label(L)
        self.lds_inc(C_KW, 8, vcnt)

    def publish_h(self, nprod_s, vt, vcnt):
        e=self.e
        e("s_waitcnt vmcnt(0)")
        self.lds_inc(C_H, vt, vcnt, rtn=True)
        L=self.a.newlabel('Lnh')
        e(f"""s_add_u32 s{sA}, s{sA}, 1
              s_cmp_lg_u32 s{sA}, s{nprod_s}
              s_cbranch_scc1 {L}""")
        e(f"""s_lshl_b32 s{sB}, s{sT}, 3
              s_add_u32 s{sB}, s{sB}, s{sJ}
              s_lshl_b32 s{sB}, s{sB}, 7
              s_add_u32 s{sB}, s{sB}, {HFLAG}""")
        self.flag_store(sB, vt)
        self.a.label(L)

    def role_a(self):
        e=self.e; a=self.a
        vL=6; vCNT=1
        vTR=14
        vB0=15
        WB=QF
        vBc=2; vAc=3; vAn=4
        D=64
        e(f"""; ---- role A ----
              v_and_b32 v8, 31, v{vL}
              v_mul_u32_u24 v{vB0}, {XNS}, v8
              v_lshrrev_b32 v8, 5, v{vL}
              v_lshl_add_u32 v{vB0}, v8, 4, v{vB0}
              s_cmp_eq_u32 s{sW}, 3
              s_cbranch_scc1 L_a_w3""")
        e(f"""v_lshrrev_b32 v{vTR}, 5, v{vL}
              v_lshlrev_b32 v{vTR}, 3, v{vTR}
              v_bfe_u32 v8, v{vL}, 2, 2
              v_add_u32 v{vTR}, v{vTR}, v8
              v_mul_u32_u24 v{vTR}, 192, v{vTR}
              v_bfe_u32 v8, v{vL}, 4, 1
              v_lshl_add_u32 v{vTR}, v8, 5, v{vTR}
              v_and_b32 v8, 3, v{vL}
              v_lshl_add_u32 v{vTR}, v8, 3, v{vTR}
              s_lshl_b32 s{sA}, s{sW}, 6
              s_add_u32 s{sA}, s{sA}, {RINGQ}
              v_add_u32 v{vTR}, s{sA}, v{vTR}""")
        self.layernorm(prog=0)
        def regs(i): return 16+4*(i%4), 32+8*(i%4)
        def s2(swap, resident, tag):
            for i in range(32): e(f"v_mov_b32 v{D+i}, 0")
            e(f"v_mov_b32 v{vBc}, v{vB0}")
            def bread(i,off):
                A,B=regs(i)
                for tt in range(2): e(f"ds_read_b128 {vr(B+4*tt,4)}, v{vBc} offset:{tt*32*XNS+off}")
            def aread(i,va,o0,o1):
                A,B=regs(i)
                e(f"ds_read_b64_tr_b16 v[{A}:{A+1}], v{va} offset:{o0}")
                e(f"ds_read_b64_tr_b16 v[{A+2}:{A+3}], v{va} offset:{o1}")
            if resident:
                e(f"v_mov_b32 v{vAc}, v{vTR}")
                bread(0,0); aread(0,vAc,0,160); bread(1,32); aread(1,vAc,640,800)
            else:
                bread(0,0); aread(0,vTR,0,768); bread(1,32); aread(1,vTR,3072,3072+768)
                e(f"s_mov_b32 s{sV}, {QCH}")
            e(f"s_mov_b32 s{sLOOP}, 10")
            a.label(f'L_s2_{tag}')
            for i in range(4):
                A,B=regs(i)
                mf=[]
                for tt in range(2):
                    acc=vr(D+16*tt,16)
                    mf.append(f"v_mfma_f32_32x32x16_bf16 {acc}, {vr(A,4)}, {vr(B+4*tt,4)}, {acc}" if not swap else f"v_mfma_f32_32x32x16_bf16 {acc}, {vr(B+4*tt,4)}, {vr(A,4)}, {acc}")
                if not resident and i%2==0:
                    e(f"""v_add_u32 v{vAn}, s{sV}, v{vTR}
                          s_add_u32 s{sV}, s{sV}, {QCH}
                          s_cmp_eq_u32 s{sV}, {QCH*QN}
                          s_cselect_b32 s{sV}, 0, s{sV}""")
                e("s_waitcnt lgkmcnt(4)")
                e(mf[0])
                bread(i+2,32*(i+2))
                e(mf[1])
                if resident: aread(i+2,vAc,640*(i+2),640*(i+2)+160)
                else:        aread(i+2,vAn,3072*(i%2),3072*(i%2)+768)
                if (i%2==1 and not (resident and self.o.get('kvfast',1))) or (i==3 and resident and self.o.get('kvfast',1)): e("s_barrier")
            e(f"v_add_u32 v{vBc}, 128, v{vBc}")
            if resident: e(f"v_add_u32 v{vAc}, 2560, v{vAc}")
            e(f"""s_sub_u32 s{sLOOP}, s{sLOOP}, 1
                  s_cmp_lg_u32 s{sLOOP}, 0
                  s_cbranch_scc1 L_s2_{tag}
                  s_waitcnt lgkmcnt(0)""")
            self.stamp(3)
            self.lds_inc(C_X, 8, vCNT)
            self.lds_inc(C_XA, 8, vCNT)
            if resident: self.lds_inc(C_KW, 8, vCNT)
        s2(False, False, 'w')
        e("s_branch L_a_ep_q")
        a.label('L_a_w3')
        e(f"""s_cmp_ge_u32 s{sJ}, 6
              s_cbranch_scc1 L_a_kv_start""")
        self.mk_srd(SRD_S,P_W1,2211840)
        e(f"s_mov_b32 s{sG}, 0")
        self.layernorm(prog=0)
        for p in range(20):
            if p%2==0 and p//2<self.o.get('pfF',0):
                self.l2_prefetch_flat(SRD_S, 2211840, vL, 8, 126, sG, 1, self.o.get('pfF0',0)+p//2, self.o.get('pfF0',0)+p//2+1, ntk='ntF')
            e("s_barrier")
        e("s_waitcnt vmcnt(0)")
        self.stamp(3)
        self.lds_inc(C_X, 8, vCNT)
        self.lds_inc(C_XA, 8, vCNT)
        e("s_branch L_a_ep_done")
        a.label('L_a_kv_start')
        e(f"""s_cmp_eq_u32 s{sJ}, 6
              s_cselect_b32 s{SRD_S}, s{P_WK}, s{P_WV}
              s_cselect_b32 s{SRD_S+1}, s{P_WK+1}, s{P_WV+1}
              s_mov_b32 s{SRD_S+2}, 25600
              s_mov_b32 s{SRD_S+3}, 0x20000
              v_lshlrev_b32 v8, 4, v{vL}""")
        for i in range(25):
            e(f"""s_mov_b32 m0, {WB+1024*i}
                  s_mov_b32 s{sOFF}, {1024*i}
                  buffer_load_dwordx4 v8, {srd(SRD_S)}, s{sOFF} offen lds""")
        e(f"""v_lshrrev_b32 v{vTR}, 5, v{vL}
              v_lshlrev_b32 v{vTR}, 3, v{vTR}
              v_bfe_u32 v8, v{vL}, 2, 2
              v_add_u32 v{vTR}, v{vTR}, v8
              v_mul_u32_u24 v{vTR}, 40, v{vTR}
              v_bfe_u32 v8, v{vL}, 4, 1
              v_lshl_add_u32 v{vTR}, v8, 5, v{vTR}
              v_and_b32 v8, 3, v{vL}
              v_lshl_add_u32 v{vTR}, v8, 3, v{vTR}
              v_add_u32 v{vTR}, {WB}, v{vTR}""")
        self.layernorm(pre_barrier="s_waitcnt vmcnt(0)", prog=25)
        e(f"""s_setprio 2
              s_cmp_eq_u32 s{sJ}, 7
              s_cbranch_scc1 L_a_s2_swapped""")
        s2(False, True, 'k')
        e("s_branch L_a_ep_k")
        a.label('L_a_s2_swapped')
        s2(True, True, 'v')
        e(f"""; ---- V epilogue ----
              v_and_b32 v8, 31, v{vL}
              v_cmp_gt_u32 vcc, 20, v8
              v_cndmask_b32 v10, 0, -1, vcc
              v_cmp_eq_u32 vcc, 20, v8
              v_mov_b32 v9, s{sONES}
              v_cndmask_b32 v11, 0, v9, vcc
              v_lshlrev_b32 v12, 4, v{vL}""")
        for tt in range(2):
            e(f"""s_lshl_b32 s{sB}, s{sT}, 1
                  s_add_u32 s{sB}, s{sB}, {tt}
                  s_lshl_b32 s{sB}, s{sB}, 11
                  s_add_u32 s{sB}, s{sB}, {VF}""")
            for fa in range(2):
                b=D+16*tt+8*fa
                for i in range(4): e(f"v_cvt_pk_bf16_f32 v{b+i}, v{b+2*i}, v{b+2*i+1}")
                for i in range(4): e(f"v_and_or_b32 v{b+i}, v{b+i}, v10, v11")
                e(f"buffer_store_dwordx4 v[{b}:{b+3}], v12, {srd(SRD_WS)}, s{sB} offen offset:{1024*fa} sc1")
        self.get_nonce(8, vCNT)
        e(f"""s_add_u32 s{sB}, s{sT}, 32
              s_lshl_b32 s{sB}, s{sB}, 7
              s_add_u32 s{sB}, s{sB}, {KVFLAG}""")
        self.kv_publish(sB, None, vCNT)
        e("s_branch L_a_ep_done")
        a.label('L_a_ep_k')
        e(f"""; ---- K epilogue ----
              v_lshlrev_b32 v12, 4, v{vL}
              v_lshlrev_b32 v13, 3, v{vL}
              v_cmp_gt_u32 s[{sM}:{sM+1}], 32, v{vL}
              v_mov_b32 v20, 0""")
        for tt in range(2):
            b=D+16*tt
            e(f"""s_lshl_b32 s{sB}, s{sT}, 1
                  s_add_u32 s{sB}, s{sB}, {tt}
                  s_mul_i32 s{sB}, s{sB}, 1536
                  s_add_u32 s{sB}, s{sB}, {KF}""")
            for i in range(6): e(f"v_cvt_pk_bf16_f32 v{b+i}, v{b+2*i}, v{b+2*i+1}")
            e(f"""v_cndmask_b32 v{b+4}, 0, v{b+4}, s[{sM}:{sM+1}]
                  v_cndmask_b32 v{b+5}, 0, v{b+5}, s[{sM}:{sM+1}]
                  v_mov_b32 v21, 0""")
            for i in range(6): e(f"v_dot2_f32_bf16 v21, v{b+i}, v{b+i}, v21")
            e(f"""v_mov_b32 v22, s{sONES}
                  v_mov_b32 v23, 0x3f80
                  v_cndmask_b32 v{b+4}, v22, v{b+4}, s[{sM}:{sM+1}]
                  v_cndmask_b32 v{b+5}, v23, v{b+5}, s[{sM}:{sM+1}]
                  buffer_store_dwordx4 v[{b}:{b+3}], v12, {srd(SRD_WS)}, s{sB} offen sc1
                  buffer_store_dwordx2 v[{b+4}:{b+5}], v13, {srd(SRD_WS)}, s{sB} offen offset:1024 sc1
                  v_mov_b32 v22, v21
                  v_permlane32_swap_b32 v22, v21
                  v_add_f32 v21, v21, v22
                  v_max_f32 v20, v20, v21""")
        for m in ("quad_perm:[1,0,3,2]","quad_perm:[2,3,0,1]","row_half_mirror","row_mirror"):
            e(f"v_max_f32_dpp v20, v20, v20 {m} row_mask:0xf bank_mask:0xf")
        e(f"""v_mov_b32 v21, v20
              v_permlane16_swap_b32 v21, v20
              v_max_f32 v20, v20, v21
              v_readfirstlane_b32 s{sC}, v20""")
        self.get_nonce(8, vCNT)
        e(f"""s_lshl_b32 s{sB}, s{sT}, 7
              s_add_u32 s{sB}, s{sB}, {KVFLAG}""")
        self.kv_publish(sB, sC, vCNT)
        e("s_branch L_a_ep_done")
        a.label('L_a_ep_q')
        Lq=a.newlabel('Lqw')
        e(f"""s_cmp_lt_u32 s{sJ}, 6
              s_cbranch_scc1 {Lq}""")
        self.lds_spin(C_KW,1,8,vCNT)
        a.label(Lq)
        c1=LN2/math.sqrt(20.0)
        e(f"""v_mov_b32 v10, {hex(f2u(c1))}
              v_mov_b32 v11, v10
              v_and_b32 v8, 31, v{vL}
              v_lshlrev_b32 v12, 4, v8
              v_add_u32 v12, {QF}, v12
              v_lshrrev_b32 v13, 5, v{vL}
              s_cmp_eq_u32 s{sW}, 1
              s_cbranch_scc1 L_a_ep_q1
              s_cmp_eq_u32 s{sW}, 2
              s_cbranch_scc1 L_a_ep_q2""")
        def qconst(g):
            head,dq=divmod(g,5)
            return head*4096 + ((dq&1)*512+(dq>>1)*8 if dq<4 else 1024)
        for c in range(3):
            if c>0: a.label(f'L_a_ep_q{c}')
            for rq in range(4 if c<2 else 2):
                C0=qconst(8*c+2*rq); C1=qconst(8*c+2*rq+1)
                e(f"""s_mov_b32 s{sA}, {C1-C0}
                      v_mad_i32_i24 v9, v13, s{sA}, v12""")
                for tt in range(2):
                    b=D+16*tt+4*rq
                    e(f"""v_pk_mul_f32 v[{b}:{b+1}], v[{b}:{b+1}], v[10:11]
                          v_pk_mul_f32 v[{b+2}:{b+3}], v[{b+2}:{b+3}], v[10:11]
                          v_cvt_pk_bf16_f32 v{b}, v{b}, v{b+1}
                          v_cvt_pk_bf16_f32 v{b+1}, v{b+2}, v{b+3}
                          ds_write_b64 v9, v[{b}:{b+1}] offset:{C0+2048*tt}""")
            e("s_waitcnt lgkmcnt(0)")
            self.lds_inc(C_Q, 8, vCNT)
            if c<2: e("s_branch L_a_ep_done")
        a.label('L_a_ep_done')
        e("s_setprio 0")
        self.stamp(4)

    def attention_reg(self):
        e=self.e; a=self.a
        vL=6; vCNT=1
        Q=12; S0=60; S1=76; P=92; KV=(100,114)
        vK16=2; vK8=3; vV16=4
        def Q1(ct): return vr(Q+6*ct,4)
        def Q2(ct): return vr(Q+6*ct+4,2)
        self.lds_spin(C_Q,3,8,vCNT)
        e(f"""v_and_b32 v8, 31, v{vL}
              v_lshlrev_b32 v9, 4, v{vL}
              v_add_u32 v9, {QF}, v9
              v_lshlrev_b32 v10, 4, v8
              v_add_u32 v10, {QF+1024}, v10""")
        for ct in range(8):
            e(f"ds_read_b128 {Q1(ct)}, v9 offset:{2048*ct}")
            e(f"ds_read_b64 {Q2(ct)}, v10 offset:{2048*ct}")
            if ct%4==3: e("s_waitcnt lgkmcnt(0)")
        self.lds_inc(C_QL,8,vCNT)
        e(f"v_cmp_gt_u32 s[{sHM}:{sHM+1}], 32, v{vL}")
        for i in range(128): e(f"v_accvgpr_write_b32 a{i}, 0")
        for ct in range(8):
            q2=Q+6*ct+4
            e(f"""v_cndmask_b32 v{q2}, 0, v{q2}, s[{sHM}:{sHM+1}]
                  v_cndmask_b32 v{q2+1}, 0, v{q2+1}, s[{sHM}:{sHM+1}]""")
        for ct in range(8):
            n=S0+ct
            e(f"v_mov_b32 v{n}, 0")
            for i in range(6): e(f"v_dot2_f32_bf16 v{n}, v{Q+6*ct+i}, v{Q+6*ct+i}, v{n}")
        for ct in range(8):
            n=S0+ct; t=S1+ct
            e(f"""v_mov_b32 v{t}, v{n}
                  v_permlane32_swap_b32 v{t}, v{n}
                  v_add_f32 v{n}, v{n}, v{t}""")
        e(f"""v_lshlrev_b32 v{vK16}, 4, v{vL}
              v_lshlrev_b32 v{vK8}, 3, v{vL}
              v_and_b32 v8, 31, v{vL}
              v_cmp_gt_u32 vcc, 21, v8
              v_mov_b32 v9, {hex(OOB)}
              v_cndmask_b32 v{vV16}, v9, v{vK16}, vcc""")
        L=a.newlabel('Lkvw')
        e(f"""s_cmp_lg_u32 s{sW}, 0
              s_cbranch_scc1 {L}""")
        self.get_nonce(8,vCNT)
        e(f"""v_lshlrev_b32 v5, 7, v{vL}
              s_mov_b32 s{sB}, {KVFLAG}""")
        self.flag_poll(5, 8, 64, sB)
        for m in ("quad_perm:[1,0,3,2]","quad_perm:[2,3,0,1]","row_half_mirror","row_mirror"):
            e(f"v_max_f32_dpp v10, v10, v10 {m} row_mask:0xf bank_mask:0xf")
        e(f"""v_mov_b32 v11, v10
              v_permlane16_swap_b32 v11, v10
              v_max_f32 v10, v10, v11
              v_mov_b32 v11, v10
              v_permlane32_swap_b32 v11, v10
              v_max_f32 v10, v10, v11
              s_mov_b64 exec, 1
              ds_write_b32 v{vCNT}, v10 offset:{C_KMAX}
              s_waitcnt lgkmcnt(0)
              v_mov_b32 v10, 1
              ds_write_b32 v{vCNT}, v10 offset:{C_KV}
              s_mov_b64 exec, -1""")
        a.label(L)
        self.lds_spin(C_KV,1,8,vCNT)
        e(f"""ds_read_b64 v[8:9], v{vCNT} offset:{C_NLO}
              s_waitcnt lgkmcnt(0)
              v_readfirstlane_b32 s{sNLO}, v8
              v_readfirstlane_b32 s{sNHI}, v9""")
        self.stamp(5)
        e(f"""s_lshl_b32 s{sA}, s{sW}, 4
              s_mul_i32 s{sK}, s{sA}, 1536
              s_add_u32 s{sK}, s{sK}, {KF}
              s_lshl_b32 s{sV}, s{sA}, 11
              s_add_u32 s{sV}, s{sV}, {VF}
              s_mov_b32 s{sQ}, s{sK}
              s_mov_b32 s{sR}, s{sV}""")
        def kvload(st):
            b=KV[st]
            e(f"""buffer_load_dwordx4 {vr(b,4)}, v{vK16}, {srd(SRD_WS)}, s{sK} offen sc1
                  buffer_load_dwordx2 {vr(b+4,2)}, v{vK8}, {srd(SRD_WS)}, s{sK} offen offset:1024 sc1
                  buffer_load_dwordx4 {vr(b+6,4)}, v{vV16}, {srd(SRD_WS)}, s{sV} offen sc1
                  buffer_load_dwordx4 {vr(b+10,4)}, v{vV16}, {srd(SRD_WS)}, s{sV} offen offset:1024 sc1
                  s_add_u32 s{sK}, s{sK}, 1536
                  s_add_u32 s{sV}, s{sV}, 2048""")
        kvload(0)
        e(f"""ds_read_b32 v8, v{vCNT} offset:{C_KMAX}
              s_waitcnt lgkmcnt(0)
              v_mov_b32 v9, 0""")
        for ct in range(8):
            n=S0+ct
            e(f"""v_mul_f32 v{n}, v{n}, v8
                  v_sqrt_f32 v{n}, v{n}
                  v_mul_f32 v{n}, {hex(f2u(1+2**-6))}, v{n}
                  v_max_f32 v9, v9, v{n}""")
        T=self.o.get('T',48.0)
        e(f"""s_mov_b32 s{sA}, {hex(f2u(T))}
              v_cmp_nge_f32 vcc, s{sA}, v9
              s_cmp_eq_u64 vcc, 0
              s_cbranch_scc1 L_a_shift""")
        for ct in range(8): e(f"v_mov_b32 v{P+ct}, {hex(f2u(-3.0e38))}")
        e(f"s_mov_b32 s{sLOOP}, 16")
        a.label('L_a_mx_loop')
        e("s_waitcnt vmcnt(0)")
        b=KV[0]
        for ct in range(8):
            e(f"""v_mfma_f32_32x32x16_bf16 {vr(S1,16)}, {vr(b,4)}, {Q1(ct)}, 0
                  v_mfma_f32_32x32x8_bf16 {vr(S1,16)}, {vr(b+4,2)}, {Q2(ct)}, {vr(S1,16)}""")
            for i in range(8): e(f"v_max3_f32 v{P+ct}, v{S1+2*i}, v{S1+2*i+1}, v{P+ct}")
        kvload(0)
        e(f"""s_sub_u32 s{sLOOP}, s{sLOOP}, 1
              s_cmp_lg_u32 s{sLOOP}, 0
              s_cbranch_scc1 L_a_mx_loop
              s_waitcnt vmcnt(0)""")
        self.lds_spin(C_QL,4,10,vCNT)
        e(f"""s_lshl_b32 s{sA}, s{sW}, 11
              s_add_u32 s{sA}, s{sA}, {QF}
              v_lshlrev_b32 v8, 2, v{vL}
              v_add_u32 v9, s{sA}, v8
              v_add_u32 v8, {QF}, v8""")
        for ct in range(8):
            n=P+ct
            e(f"""v_mov_b32 v10, v{n}
                  v_permlane32_swap_b32 v10, v{n}
                  v_max_f32 v{n}, v{n}, v10
                  ds_write_b32 v9, v{n} offset:{256*ct}""")
        e("s_waitcnt lgkmcnt(0)")
        self.lds_inc(C_MX,10,vCNT)
        self.lds_spin(C_MX,4,10,vCNT)
        for ct in range(8):
            for w in range(4): e(f"ds_read_b32 v{S1+w}, v8 offset:{2048*w+256*ct}")
            e(f"""s_waitcnt lgkmcnt(0)
                  v_max3_f32 v{S0+ct}, v{S1}, v{S1+1}, v{S1+2}
                  v_max_f32 v{S0+ct}, v{S0+ct}, v{S1+3}""")
        e(f"""s_mov_b32 s{sK}, s{sQ}
              s_mov_b32 s{sV}, s{sR}""")
        kvload(0)
        a.label('L_a_shift')
        for ct in range(8):
            n=S0+ct; q2=Q+6*ct+4
            e(f"""v_sub_f32 v{n}, 0, v{n}
                  v_cvt_pk_bf16_f32 v8, v{n}, v{n}
                  v_lshlrev_b32 v8, 16, v8
                  v_sub_f32 v9, v{n}, v8
                  v_cvt_pk_bf16_f32 v10, v{n}, v9
                  v_and_b32 v8, 0xffff0000, v10
                  v_sub_f32 v9, v9, v8
                  v_cvt_pk_bf16_f32 v11, v9, 0
                  v_cndmask_b32 v{q2}, v10, v{q2}, s[{sHM}:{sHM+1}]
                  v_cndmask_b32 v{q2+1}, v11, v{q2+1}, s[{sHM}:{sHM+1}]""")
        for i in range(4): e(f"v_mov_b32 v{P+4+i}, 0")
        for i in range(4): e(f"v_mov_b32 v{KV[1]+10+i}, 0")
        e("s_waitcnt vmcnt(0)")
        self.lds_inc(C_LS, 8, vCNT)
        b=KV[0]
        e(f"""v_mfma_f32_32x32x16_bf16 {vr(S0,16)}, {vr(b,4)}, {Q1(0)}, 0
              v_mfma_f32_32x32x8_bf16 {vr(S0,16)}, {vr(b+4,2)}, {Q2(0)}, {vr(S0,16)}
              s_mov_b32 s{sLOOP}, 8
              s_setprio {self.o.get('prioA',1)}
              s_nop 9""")
        self.stamp(6)
        e(".p2align 6")
        a.label('L_a_loop')
        for st in range(2):
            cur=KV[st]; oth=KV[st^1]
            for ct in range(8):
                S=S0 if ct%2==0 else S1; N=S1 if ct%2==0 else S0
                nct=(ct+1)%8; kb=cur if ct<7 else oth
                pct=(ct+7)%8; vb=cur if ct>0 else oth
                ex=lambda i: f"v_exp_f32 v{S+i}, v{S+i}"
                cv=lambda i: f"v_cvt_pk_bf16_f32 v{P+i}, v{S+2*i}, v{S+2*i+1}"
                qk1=f"v_mfma_f32_32x32x16_bf16 {vr(N,16)}, {vr(kb,4)}, {Q1(nct)}, 0"
                qk2=f"v_mfma_f32_32x32x8_bf16 {vr(N,16)}, {vr(kb+4,2)}, {Q2(nct)}, {vr(N,16)}"
                pvb=f"v_mfma_f32_32x32x16_bf16 {ar(16*pct,16)}, {vr(vb+10,4)}, {vr(P+4,4)}, {ar(16*pct,16)}"
                pva=f"v_mfma_f32_32x32x16_bf16 {ar(16*ct,16)}, {vr(cur+6,4)}, {vr(P,4)}, {ar(16*ct,16)}"
                if ct==7: e("s_waitcnt vmcnt(0)")
                for x in [qk1,ex(0),ex(1),ex(2),ex(3),cv(0),cv(1),qk2,ex(4),ex(5),ex(6),ex(7),cv(2),cv(3),pvb]: e(x)
                if ct==0: kvload(st^1)
                for x in [ex(8),ex(9),ex(10),ex(11),cv(4),cv(5),pva,ex(12),ex(13),ex(14),ex(15),cv(6),cv(7)]: e(x)
        e(f"""s_sub_u32 s{sLOOP}, s{sLOOP}, 1
              s_cmp_lg_u32 s{sLOOP}, 0
              s_cbranch_scc1 L_a_loop
              v_mfma_f32_32x32x16_bf16 {ar(112,16)}, {vr(KV[1]+10,4)}, {vr(P+4,4)}, {ar(112,16)}
              s_setprio 0
              s_waitcnt vmcnt(0)""")
        self.stamp(7)

    def attention(self):
        e=self.e; a=self.a
        vL=6; vCNT=1
        Q=12
        NB=60
        S=(24,40); P=(56,64); KV=(72,86,100)
        vK16=2; vK8=3; vV16=4; vQ1=5; vQ2=7
        def Q1(ct): return vr(Q+6*ct,4)
        def Q2(ct): return vr(Q+6*ct+4,2)
        self.lds_spin(C_Q,3,8,vCNT)
        e(f"""v_and_b32 v8, 31, v{vL}
              v_lshlrev_b32 v9, 4, v{vL}
              v_add_u32 v9, {QF}, v9
              v_lshlrev_b32 v10, 4, v8
              v_add_u32 v10, {QF+1024}, v10""")
        for ct in range(8):
            e(f"ds_read_b128 {Q1(ct)}, v9 offset:{2048*ct}")
            e(f"ds_read_b64 {Q2(ct)}, v10 offset:{2048*ct}")
            if ct%4==3: e("s_waitcnt lgkmcnt(0)")
        e(f"v_cmp_gt_u32 s[{sHM}:{sHM+1}], 32, v{vL}")
        for i in range(128): e(f"v_accvgpr_write_b32 a{i}, 0")
        for ct in range(8):
            q2=Q+6*ct+4
            e(f"""v_cndmask_b32 v{q2}, 0, v{q2}, s[{sHM}:{sHM+1}]
                  v_cndmask_b32 v{q2+1}, 0, v{q2+1}, s[{sHM}:{sHM+1}]""")
        for ct in range(8):
            n=NB+ct
            e(f"v_mov_b32 v{n}, 0")
            for i in range(6): e(f"v_dot2_f32_bf16 v{n}, v{Q+6*ct+i}, v{Q+6*ct+i}, v{n}")
        for ct in range(8):
            n=NB+ct; t=76+ct
            e(f"""v_mov_b32 v{t}, v{n}
                  v_permlane32_swap_b32 v{t}, v{n}
                  v_add_f32 v{n}, v{n}, v{t}""")
        e(f"""v_lshlrev_b32 v{vK16}, 4, v{vL}
              v_lshlrev_b32 v{vK8}, 3, v{vL}
              v_and_b32 v8, 31, v{vL}
              v_cmp_gt_u32 vcc, 21, v8
              v_mov_b32 v11, {hex(OOB)}
              v_cndmask_b32 v{vV16}, v11, v{vK16}, vcc
              v_lshrrev_b32 v8, 5, v{vL}
              v_lshl_add_u32 v{vQ2}, v8, 3, v10""")
        L=a.newlabel('Lkvw')
        e(f"""s_cmp_lg_u32 s{sW}, 0
              s_cbranch_scc1 {L}""")
        self.get_nonce(8,vCNT)
        e(f"""v_lshlrev_b32 v5, 7, v{vL}
              s_mov_b32 s{sB}, {KVFLAG}""")
        self.flag_poll(5, 8, 64, sB)
        for m in ("quad_perm:[1,0,3,2]","quad_perm:[2,3,0,1]","row_half_mirror","row_mirror"):
            e(f"v_max_f32_dpp v10, v10, v10 {m} row_mask:0xf bank_mask:0xf")
        e(f"""v_mov_b32 v11, v10
              v_permlane16_swap_b32 v11, v10
              v_max_f32 v10, v10, v11
              v_mov_b32 v11, v10
              v_permlane32_swap_b32 v11, v10
              v_max_f32 v10, v10, v11
              s_mov_b64 exec, 1
              ds_write_b32 v{vCNT}, v10 offset:{C_KMAX}
              s_waitcnt lgkmcnt(0)
              v_mov_b32 v10, 1
              ds_write_b32 v{vCNT}, v10 offset:{C_KV}
              s_mov_b64 exec, -1""")
        a.label(L)
        e(f"""v_lshlrev_b32 v{vQ1}, 4, v{vL}
              v_add_u32 v{vQ1}, {QF}, v{vQ1}""")
        self.lds_spin(C_KV,1,8,vCNT)
        e(f"""ds_read_b64 v[8:9], v{vCNT} offset:{C_NLO}
              s_waitcnt lgkmcnt(0)
              v_readfirstlane_b32 s{sNLO}, v8
              v_readfirstlane_b32 s{sNHI}, v9""")
        self.stamp(5)
        e(f"""s_lshl_b32 s{sA}, s{sW}, 4
              s_mul_i32 s{sK}, s{sA}, 1536
              s_add_u32 s{sK}, s{sK}, {KF}
              s_lshl_b32 s{sV}, s{sA}, 11
              s_add_u32 s{sV}, s{sV}, {VF}
              s_mov_b32 s{sQ}, s{sK}""")
        def kvload(st):
            b=KV[st]
            e(f"""buffer_load_dwordx4 {vr(b,4)}, v{vK16}, {srd(SRD_WS)}, s{sK} offen sc1
                  buffer_load_dwordx2 {vr(b+4,2)}, v{vK8}, {srd(SRD_WS)}, s{sK} offen offset:1024 sc1
                  buffer_load_dwordx4 {vr(b+6,4)}, v{vV16}, {srd(SRD_WS)}, s{sV} offen sc1
                  buffer_load_dwordx4 {vr(b+10,4)}, v{vV16}, {srd(SRD_WS)}, s{sV} offen offset:1024 sc1
                  s_add_u32 s{sK}, s{sK}, 1536
                  s_add_u32 s{sV}, s{sV}, 2048""")
        kvload(0); kvload(1)
        e(f"""ds_read_b32 v8, v{vCNT} offset:{C_KMAX}
              s_waitcnt lgkmcnt(0)
              v_mov_b32 v9, 0""")
        for ct in range(8):
            n=NB+ct
            e(f"""v_mul_f32 v{n}, v{n}, v8
                  v_sqrt_f32 v{n}, v{n}
                  v_mul_f32 v{n}, {hex(f2u(1+2**-6))}, v{n}
                  v_max_f32 v9, v9, v{n}""")
        T=self.o.get('T',48.0)
        e(f"""s_mov_b32 s{sA}, {hex(f2u(T))}
              v_cmp_nge_f32 vcc, s{sA}, v9
              s_cmp_eq_u64 vcc, 0
              s_cbranch_scc1 L_a_shift""")
        ST_=100; KB=116
        for ct in range(8): e(f"v_mov_b32 v{NB+ct}, {hex(f2u(-3.0e38))}")
        e(f"s_mov_b32 s{sLOOP}, 16")
        a.label('L_a_mx_loop')
        e(f"""buffer_load_dwordx4 {vr(KB,4)}, v{vK16}, {srd(SRD_WS)}, s{sQ} offen sc1
              buffer_load_dwordx2 {vr(KB+4,2)}, v{vK8}, {srd(SRD_WS)}, s{sQ} offen offset:1024 sc1
              s_add_u32 s{sQ}, s{sQ}, 1536
              s_waitcnt vmcnt(0)""")
        for ct in range(8):
            e(f"""v_mfma_f32_32x32x16_bf16 {vr(ST_,16)}, {vr(KB,4)}, {Q1(ct)}, 0
                  v_mfma_f32_32x32x8_bf16 {vr(ST_,16)}, {vr(KB+4,2)}, {Q2(ct)}, {vr(ST_,16)}""")
            for i in range(8): e(f"v_max3_f32 v{NB+ct}, v{ST_+2*i}, v{ST_+2*i+1}, v{NB+ct}")
        e(f"""s_sub_u32 s{sLOOP}, s{sLOOP}, 1
              s_cmp_lg_u32 s{sLOOP}, 0
              s_cbranch_scc1 L_a_mx_loop""")
        MX0=82944; MX3=161792
        e(f"""s_lshl_b32 s{sA}, s{sW}, 10
              s_add_u32 s{sA}, s{sA}, {MX0}
              s_cmp_eq_u32 s{sW}, 3
              s_cselect_b32 s{sA}, {MX3}, s{sA}
              v_and_b32 v8, 31, v{vL}
              v_lshlrev_b32 v8, 2, v8
              v_add_u32 v9, s{sA}, v8""")
        for ct in range(8):
            n=NB+ct
            e(f"""v_mov_b32 v10, v{n}
                  v_permlane32_swap_b32 v10, v{n}
                  v_max_f32 v{n}, v{n}, v10
                  ds_write_b32 v9, v{n} offset:{128*ct}""")
        e("s_waitcnt lgkmcnt(0)")
        self.lds_inc(C_MX,10,vCNT)
        self.lds_spin(C_MX,4,10,vCNT)
        e(f"""v_add_u32 v9, {MX0}, v8
              v_add_u32 v8, {MX3}, v8""")
        for ct in range(8):
            for w in range(3): e(f"ds_read_b32 v{ST_+w}, v9 offset:{1024*w+128*ct}")
            e(f"""ds_read_b32 v{ST_+3}, v8 offset:{128*ct}
                  s_waitcnt lgkmcnt(0)
                  v_max3_f32 v{NB+ct}, v{ST_}, v{ST_+1}, v{ST_+2}
                  v_max_f32 v{NB+ct}, v{NB+ct}, v{ST_+3}""")
        a.label('L_a_shift')
        for ct in range(8):
            n=NB+ct; q2=Q+6*ct+4
            e(f"""v_sub_f32 v{n}, 0, v{n}
                  v_cvt_pk_bf16_f32 v8, v{n}, v{n}
                  v_lshlrev_b32 v8, 16, v8
                  v_sub_f32 v9, v{n}, v8
                  v_cvt_pk_bf16_f32 v10, v{n}, v9
                  v_and_b32 v8, 0xffff0000, v10
                  v_sub_f32 v9, v9, v8
                  v_cvt_pk_bf16_f32 v11, v9, 0
                  v_cndmask_b32 v{q2}, v10, v{q2}, s[{sHM}:{sHM+1}]
                  v_cndmask_b32 v{q2+1}, v11, v{q2+1}, s[{sHM}:{sHM+1}]
                  ds_write_b64 v{vQ2}, v[{q2}:{q2+1}] offset:{2048*ct}""")
        for i in range(8): e(f"v_mov_b32 v{P[1]+i}, 0")
        for i in range(8): e(f"v_mov_b32 v{KV[2]+6+i}, 0")
        e("s_waitcnt vmcnt(4) lgkmcnt(0)")
        self.lds_inc(C_LS, 8, vCNT)
        b=KV[0]
        e(f"""v_mfma_f32_32x32x16_bf16 {vr(S[0],16)}, {vr(b,4)}, {vr(12,4)}, 0
              v_mfma_f32_32x32x8_bf16 {vr(S[0],16)}, {vr(b+4,2)}, {vr(16,2)}, {vr(S[0],16)}
              s_mov_b32 s{sLOOP}, {self.o.get('aloop',5)}
              s_setprio {self.o.get('prioA',1)}
              s_nop 9""")
        self.stamp(6)
        if self.o.get('kvstall'): e("s_mov_b32 s19, 0")
        def q1(st): return vr(12+6*st,4)
        def q2(st): return vr(16+6*st,2)
        def keytile(k3, last):
            cur=KV[k3]; nxt=KV[(k3+1)%3]; prv=KV[(k3+2)%3]
            for ct in range(8):
                Sc=S[ct%2]; N=S[(ct+1)%2]; Pc=P[ct%2]; Pp=P[(ct+1)%2]
                kb=cur if ct<7 else nxt
                pct=(ct+7)%8; vb=cur if ct>0 else prv
                qs=(ct+1)%2
                ex=lambda i: f"v_exp_f32 v{Sc+i}, v{Sc+i}"
                cv=lambda i: f"v_cvt_pk_bf16_f32 v{Pc+i}, v{Sc+2*i}, v{Sc+2*i+1}"
                qk1=f"v_mfma_f32_32x32x16_bf16 {vr(N,16)}, {vr(kb,4)}, {q1(qs)}, 0"
                qk2=f"v_mfma_f32_32x32x8_bf16 {vr(N,16)}, {vr(kb+4,2)}, {q2(qs)}, {vr(N,16)}"
                pva=f"v_mfma_f32_32x32x16_bf16 {ar(16*pct,16)}, {vr(vb+6,4)}, {vr(Pp,4)}, {ar(16*pct,16)}"
                pvb=f"v_mfma_f32_32x32x16_bf16 {ar(16*pct,16)}, {vr(vb+10,4)}, {vr(Pp+4,4)}, {ar(16*pct,16)}"
                doqk = not (last and ct==7)
                if doqk:
                    if ct==7 and self.o.get('kvstall'):
                        e("""s_memtime s[100:101]
                             s_waitcnt lgkmcnt(0)
                             s_mov_b32 s3, s100
                             s_waitcnt vmcnt(4)
                             s_memtime s[100:101]
                             s_waitcnt lgkmcnt(0)
                             s_sub_u32 s3, s100, s3
                             s_add_u32 s19, s19, s3""")
                    elif ct==7: e("s_waitcnt vmcnt(4) lgkmcnt(0)")
                    else:     e("s_waitcnt lgkmcnt(0)")
                    e(qk1)
                for i in range(0,3): e(ex(i))
                if doqk: e(qk2)
                if not (last and ct>=6):
                    c2=(ct+2)%8
                    e(f"ds_read_b128 {q1(ct%2)}, v{vQ1} offset:{2048*c2}")
                    e(f"ds_read_b64 {q2(ct%2)}, v{vQ2} offset:{2048*c2}")
                for i in range(3,6): e(ex(i))
                e(pva)
                for i in range(6,9): e(ex(i))
                e(pvb)
                if ct==0 and not last: kvload((k3+2)%3)
                for i in range(9,16): e(ex(i))
                for i in range(8): e(cv(i))
        e(".p2align 6")
        a.label('L_a_loop')
        for k3 in range(3): keytile(k3, False)
        e(f"""s_sub_u32 s{sLOOP}, s{sLOOP}, 1
              s_cmp_lg_u32 s{sLOOP}, 0
              s_cbranch_scc1 L_a_loop""")
        keytile(0, True)
        e(f"""v_mfma_f32_32x32x16_bf16 {ar(112,16)}, {vr(KV[0]+6,4)}, {vr(P[1],4)}, {ar(112,16)}
              v_mfma_f32_32x32x16_bf16 {ar(112,16)}, {vr(KV[0]+10,4)}, {vr(P[1]+4,4)}, {ar(112,16)}
              s_setprio 0
              s_waitcnt vmcnt(0)""")
        self.stamp(7)
        if self.o.get('kvstall'): e("s_add_u32 s96, s19, s88")

    def o_reduce(self):
        e=self.e; a=self.a
        vL=6; vCNT=1
        e("; ---- O reduction ----")
        self.lds_spin(C_X,8,8,vCNT)
        e(f"v_lshlrev_b32 v9, 4, v{vL}")
        for w in range(4):
            if w>0: a.label(f'L_a_ow{w}')
            if w==0:
                e(f"""s_cmp_eq_u32 s{sW}, 1
                      s_cbranch_scc1 L_a_ow1
                      s_cmp_eq_u32 s{sW}, 2
                      s_cbranch_scc1 L_a_ow2
                      s_cmp_eq_u32 s{sW}, 3
                      s_cbranch_scc1 L_a_ow3""")
            for d in range(4):
                if d==w: continue
                slot=w-(1 if w>d else 0)
                base=ored(d*3+slot)
                e(f"v_add_u32 v10, {base}, v9")
                for tt in range(2):
                    for q in range(3):
                        e(f"ds_write_b128 v10, {ar(16*(2*d+tt)+4*q,4)} offset:{(tt*3+q)*1024}")
            for tt in range(2):
                for i in range(12): e(f"v_accvgpr_read_b32 v{16+12*tt+i}, a{16*(2*w+tt)+i}")
            if w<3: e("s_branch L_a_ow_done")
        a.label('L_a_ow_done')
        e("s_waitcnt lgkmcnt(0)")
        self.lds_inc(C_OW,8,vCNT)
        self.lds_spin(C_OW,4,8,vCNT)
        if not self.o.get('kvstall'): self.stamp(8)
        e(f"""s_mul_i32 s{sA}, s{sW}, {3*6144}
              s_add_u32 s{sA}, s{sA}, {ored(0)}
              s_cmp_eq_u32 s{sW}, 3
              s_cselect_b32 s{sA}, {ored(9)}, s{sA}
              v_add_u32 v10, s{sA}, v9""")
        for slot in range(3):
            for k in range(6):
                e(f"ds_read_b128 {vr(40+4*k,4)}, v10 offset:{slot*6144+k*1024}")
            e("s_waitcnt lgkmcnt(0)")
            for i in range(0,24,2):
                e(f"v_pk_add_f32 v[{16+i}:{17+i}], v[{16+i}:{17+i}], v[{40+i}:{41+i}]")
        e(f"""s_lshl_b32 s{sB}, s{sT}, 1
              s_mul_i32 s{sB}, s{sB}, 40
              s_mul_i32 s{sC}, s{sJ}, 5
              s_add_u32 s{sB}, s{sB}, s{sC}
              s_lshl_b32 s{sB}, s{sB}, 10
              s_add_u32 s{sB}, s{sB}, {OF}
              s_lshl_b32 s{sC}, s{sW}, 10
              s_add_u32 s{sC}, s{sC}, s{sB}
              s_add_u32 s{sD}, s{sB}, 4096
              v_and_b32 v10, 31, v{vL}
              v_lshlrev_b32 v10, 4, v10
              s_and_b32 s{sE}, s{sW}, 1
              s_lshl_b32 s{sE}, s{sE}, 9
              s_lshr_b32 s{sF}, s{sW}, 1
              s_lshl_b32 s{sF}, s{sF}, 3
              s_add_u32 s{sE}, s{sE}, s{sF}
              v_add_u32 v10, s{sE}, v10
              v_cmp_gt_u32 vcc, 32, v{vL}
              v_mov_b32 v11, {hex(OOB)}
              v_cndmask_b32 v10, v11, v10, vcc""")
        for tt in range(2):
            b=16+12*tt
            e(f"""v_mov_b32 v12, v{b+8}
                  v_mov_b32 v13, v{b+8}
                  v_permlane32_swap_b32 v12, v13
                  v_rcp_f32 v13, v13
                  v_mov_b32 v12, v13""")
            for i in range(0,12,2): e(f"v_pk_mul_f32 v[{b+i}:{b+i+1}], v[{b+i}:{b+i+1}], v[12:13]")
            for i in range(6): e(f"v_cvt_pk_bf16_f32 v{b+i}, v{b+2*i}, v{b+2*i+1}")
            e(f"""buffer_store_dwordx4 {vr(b,4)}, v9, {srd(SRD_WS)}, s{sC} offen sc1
                  buffer_store_dwordx2 {vr(b+4,2)}, v10, {srd(SRD_WS)}, s{sD} offen sc1""")
            if tt==0: e(f"""s_add_u32 s{sC}, s{sC}, {40*1024}
                            s_add_u32 s{sD}, s{sD}, {40*1024}""")
        e("s_waitcnt vmcnt(0)")
        self.lds_inc(C_OS,8,vCNT,rtn=True)
        L=a.newlabel('Lno')
        e(f"""s_cmp_lg_u32 s{sA}, 3
              s_cbranch_scc1 {L}""")
        e(f"""s_lshl_b32 s{sB}, s{sT}, 3
              s_add_u32 s{sB}, s{sB}, s{sJ}
              s_lshl_b32 s{sB}, s{sB}, 7
              s_add_u32 s{sB}, s{sB}, {OFLAG}""")
        self.flag_store(sB, 8)
        a.label(L)
        self.stamp(9)

    def role_f(self):
        e=self.e; a=self.a
        vL=6; vCNT=1
        vS1=7; vS2=14; vTR=15; vB0=12
        e(f"""; ---- role F ----
              s_sub_u32 s{sI}, s{sW}, 4
              s_lshl_b32 s{sA}, s{sJ}, 2
              s_mul_i32 s{sB}, s{sJ}, 3
              s_add_u32 s{sB}, s{sB}, 3
              s_cmp_ge_u32 s{sJ}, 3
              s_cselect_b32 s{sA}, s{sB}, s{sA}
              s_cselect_b32 s{sP}, 3, 4
              s_add_u32 s{sA}, s{sA}, s{sI}
              s_lshl_b32 s{sCF1}, s{sA}, 1
              s_add_u32 s{sCF2}, s{sCF1}, 1""")
        self.mk_srd(SRD_W2,P_WQ,819200)
        npf=0
        if self.o.get('pfQ2',0): npf=self.l2_prefetch_flat(SRD_W2, 819200, vL, 8, 127, sI, 4, ntk='ntQ')
        vWq=7
        e(f"""s_cmp_eq_u32 s{sI}, 3
              s_cbranch_scc1 L_f_w7_pre""")
        e(f"s_lshl_b32 s{sC}, s{sI}, 6")
        self.w192_voff(vWq, f"s{sC}", vL, False, 8, 9)
        e(f"""s_lshl_b32 s{sRING}, s{sI}, 10
              s_add_u32 s{sRING}, s{sRING}, {RINGQ}
              s_mov_b32 s{sOFF}, 0""")
        def qdma(slot_imm=None):
            for st in range(2):
                if slot_imm is not None: e(f"s_add_u32 m0, s{sRING}, {slot_imm+3072*st}")
                else:
                    e(f"s_add_u32 s{sA}, s{sRING}, s{sK}")
                    e(f"s_add_u32 m0, s{sA}, {3072*st}")
                e(f"""s_mov_b32 s{sB}, s{sOFF}
                      s_add_u32 s{sOFF}, s{sOFF}, 20480
                      buffer_load_dwordx4 v{vWq}, {srd(SRD_W2)}, s{sB} offen{self.NT('ntWA')} lds""")
        if self.o.get('qfillLN',1):
            self.layernorm([(lambda n=n: qdma(QCH*n)) for n in range(QN-1)], pre_barrier=f"s_waitcnt vmcnt({2*(QN-3)})", prog=npf)
        else:
            for n in range(QN-1): qdma(QCH*n)
            e(f"s_waitcnt vmcnt({2*(QN-1)+npf})")
            self.layernorm(pre_barrier=f"s_waitcnt vmcnt({2*(QN-3)})")
        e(f"""s_mov_b32 s{sK}, {QCH*(QN-1)}
              s_mov_b32 s{sLOOP}, 20""")
        a.label('L_f_qstage')
        qdma()
        e(f"""s_add_u32 s{sK}, s{sK}, {QCH}
              s_cmp_eq_u32 s{sK}, {QCH*QN}
              s_cselect_b32 s{sK}, 0, s{sK}
              s_waitcnt vmcnt({2*(QN-3)})
              s_barrier
              s_sub_u32 s{sLOOP}, s{sLOOP}, 1
              s_cmp_lg_u32 s{sLOOP}, 0
              s_cbranch_scc1 L_f_qstage
              s_waitcnt vmcnt(0)
              s_branch L_f_qdone""")
        a.label('L_f_w7_pre')
        self.mk_srd(SRD_S,P_W1,2211840)
        self.layernorm(prog=npf)
        e(f"s_mov_b32 s{sG}, 0\nv_mov_b32 v10, 0\ns_mov_b32 s{sH}, 0")
        def nonce_to_lds():
            e(f"""s_mov_b64 exec, 1
                  ds_write_b32 v{vCNT}, v9 offset:{C_NHI}
                  s_waitcnt lgkmcnt(0)
                  v_or_b32 v8, 1, v8
                  ds_write_b32 v{vCNT}, v8 offset:{C_NLO}
                  s_mov_b64 exec, -1""")
        for p in range(20):
            if p==0: e(f"global_load_dwordx2 v[8:9], v10, s[{P_DBG}:{P_DBG+1}] sc1")
            if p==5:
                Ln=a.newlabel('Lnn')
                e(f"""s_waitcnt vmcnt(0)
                      v_readfirstlane_b32 s{sH}, v8
                      s_cmp_eq_u32 s{sH}, 0
                      s_cbranch_scc1 {Ln}""")
                nonce_to_lds()
                a.label(Ln)
            if p==9:
                LP=a.newlabel('Lnp'); LD=a.newlabel('Lnd'); LE=a.newlabel('Lne')
                e(f"""s_cmp_lg_u32 s{sH}, 0
                      s_cbranch_scc1 {LE}
                      s_mov_b32 s{sSPIN}, {SPIN_MAX}""")
                a.label(LP)
                e(f"""global_load_dwordx2 v[8:9], v10, s[{P_DBG}:{P_DBG+1}] sc1
                      s_waitcnt vmcnt(0)
                      v_readfirstlane_b32 s{sA}, v8
                      s_cmp_lg_u32 s{sA}, 0
                      s_cbranch_scc1 {LD}
                      s_sleep 1
                      s_sub_u32 s{sSPIN}, s{sSPIN}, 1
                      s_cmp_lg_u32 s{sSPIN}, 0
                      s_cbranch_scc1 {LP}""")
                a.label(LD)
                nonce_to_lds()
                a.label(LE)
            if p>=6 and p%2==0 and (p-6)//2<self.o.get('pfF',0):
                Lp=a.newlabel('Lw7pf')
                e(f"s_cmp_lt_u32 s{sJ}, 6\ns_cbranch_scc1 {Lp}")
                self.l2_prefetch_flat(SRD_S, 2211840, vL, 11, 'a127', sG, 1, self.o.get('pfF0',0)+(p-6)//2, self.o.get('pfF0',0)+(p-6)//2+1, ntk='ntF')
                a.label(Lp)
            e("s_barrier")
        a.label('L_f_qdone')
        self.lds_inc(C_XA, 8, vCNT)
        e(f"""s_setprio 3
              s_mov_b32 s{SRD_S}, s{P_W1}
              s_mov_b32 s{SRD_S+1}, s{P_W1+1}
              s_mov_b32 s{SRD_S+2}, 2211840
              s_mov_b32 s{SRD_S+3}, 0x20000
              s_mov_b32 s{sSTEP}, 55296
              s_sub_u32 s{sOFF}, 0, s{sSTEP}
              s_mul_i32 s{sRING}, s{sI}, {RING_F_SZ}
              s_add_u32 s{sRING}, s{sRING}, {RING_F}
              s_lshl_b32 s{sD}, s{sCF1}, 6""")
        self.mk_srd(SRD_WO,P_WO,819200)
        e(f"""v_lshrrev_b32 v8, 3, v{vL}
              v_mul_u32_u24 v{vS1}, 3456, v8
              v_bfe_u32 v9, v{vL}, 4, 1
              v_lshlrev_b32 v9, 2, v9
              v_and_b32 v8, 7, v{vL}
              v_xor_b32 v8, v8, v9
              v_lshl_add_u32 v{vS1}, v8, 4, v{vS1}
              v_add_u32 v{vS1}, s{sD}, v{vS1}
              v_add_u32 v{vS2}, {8*3456}, v{vS1}
              v_lshrrev_b32 v{vTR}, 5, v{vL}
              v_lshlrev_b32 v{vTR}, 3, v{vTR}
              v_bfe_u32 v8, v{vL}, 2, 2
              v_add_u32 v{vTR}, v{vTR}, v8
              v_lshlrev_b32 v{vTR}, 7, v{vTR}
              v_bfe_u32 v8, v{vL}, 3, 1
              v_lshl_add_u32 v{vTR}, v8, 6, v{vTR}
              v_bfe_u32 v8, v{vL}, 4, 1
              v_lshl_add_u32 v{vTR}, v8, 5, v{vTR}
              v_and_b32 v8, 3, v{vL}
              v_lshl_add_u32 v{vTR}, v8, 3, v{vTR}
              v_add_u32 v{vTR}, s{sRING}, v{vTR}
              v_xor_b32 v13, 64, v{vTR}""")
        adv=f"s_add_u32 s{sOFF}, s{sOFF}, s{sSTEP}"
        self.mk_srd(SRD_W2,P_W2,2211840)
        self.get_nonce(8,vCNT)
        e(f"""s_cmp_ge_u32 s{sI}, s{sP}
              s_cbranch_scc1 L_f_ffn1_skip""")
        e(f"""v_and_b32 v8, 31, v{vL}
              v_mul_u32_u24 v{vB0}, {XNS}, v8
              v_lshrrev_b32 v8, 5, v{vL}
              v_lshl_add_u32 v{vB0}, v8, 4, v{vB0}""")
        e("; MARK_F_BEGIN")
        D=64
        self.lds_spin(C_XA,8,8,vCNT)
        if self.o.get('quiet',0)==3:
            Lq3=a.newlabel('Lq3')
            e(f"s_cmp_lt_u32 s{sJ}, 6\ns_cbranch_scc1 {Lq3}")
            self.lds_spin(C_KW,2,8,vCNT)
            a.label(Lq3)
        if self.o.get('quiet',0)==1: self.lds_spin(C_KV,1,8,vCNT)
        if self.o.get('quiet',0)==2: self.lds_spin(C_LS,4,8,vCNT)
        NS=self.o.get('ns1',5); U=NS if NS%2==0 else 2*NS
        vm=Cnt(a,'vmcnt',63); lg=Cnt(a,'lgkmcnt',15)
        for s in range(NS):
            self.dma(SRD_S, vS1, sOFF, sRING, 2048*s, adv)
            self.dma(SRD_S, vS2, sOFF, sRING, 2048*s+1024)
        for i in range(64): e(f"v_mov_b32 v{D+i}, 0")
        def regs(i): return 16+8*(i%2), 32+8*(i%2)
        def bread(i,off):
            A,B=regs(i)
            for tt in range(2): e(f"ds_read_b128 {vr(B+4*tt,4)}, v{vB0} offset:{tt*32*XNS+off}")
        def aread(i,st):
            A,B=regs(i); slot=2048*(i%NS); va=(vTR,13)[st]
            e(f"ds_read_b64_tr_b16 v[{A+4*st}:{A+4*st+1}], v{va} offset:{slot}")
            e(f"ds_read_b64_tr_b16 v[{A+4*st+2}:{A+4*st+3}], v{va} offset:{slot+512}")
        e(f"s_waitcnt vmcnt({2*NS-2})")
        aread(0,0); aread(0,1); bread(0,0)
        tog=self.o.get('toggle1',0)
        e(f"s_setprio {self.o.get('prioFl',3) if tog else self.o.get('prioF1',0)}")
        def step(i, s_abs, rolled):
            A,B=regs(i)
            mf=[]
            for st in range(2):
                for tt in range(2):
                    r=vr(D+32*st+16*tt,16)
                    mf.append(f"v_mfma_f32_32x32x16_bf16 {r}, {vr(A+4*st,4)}, {vr(B+4*tt,4)}, {r}")
            more = rolled or s_abs+1<40
            fl=[]
            if more:
                fl.append(lambda: (e(f"s_waitcnt vmcnt({2*NS-4})"), aread(i+1,0), aread(i+1,1)))
                fl.append(lambda: bread(i+1,32*(i+1)))
            fl.append(lambda: self.dma(SRD_S, vS1, sOFF, sRING, 2048*(i%NS), adv))
            fl.append(lambda: self.dma(SRD_S, vS2, sOFF, sRING, 2048*(i%NS)+1024))
            e("s_waitcnt lgkmcnt(0)")
            self.weave(mf,fl,tog)
        nit=40//U
        if nit:
            e(f"s_mov_b32 s{sLOOP}, {nit}")
            a.label('L_ffn1')
            for i in range(U): step(i,None,True)
            e(f"""v_add_u32 v{vB0}, {32*U}, v{vB0}
                  s_sub_u32 s{sLOOP}, s{sLOOP}, 1
                  s_cmp_lg_u32 s{sLOOP}, 0
                  s_cbranch_scc1 L_ffn1""")
        for r in range(40-nit*U): step(r, nit*U+r, False)
        e(f"""s_setprio {self.o.get('prioFv',3)}
              s_waitcnt lgkmcnt(0)""")
        e("s_waitcnt vmcnt(0)")
        self.stamp(3)
        self.lds_inc(C_X, 8, vCNT)
        e(f"v_lshlrev_b32 v12, 4, v{vL}")
        for st in range(2):
            for tt in range(2):
                cf=(sCF1,sCF2)[st]
                e(f"""s_lshl_b32 s{sB}, s{sT}, 1
                      s_add_u32 s{sB}, s{sB}, {tt}
                      s_mul_i32 s{sB}, s{sB}, 108
                      s_lshl_b32 s{sC}, s{cf}, 1
                      s_add_u32 s{sB}, s{sB}, s{sC}
                      s_lshl_b32 s{sB}, s{sB}, 10
                      s_add_u32 s{sB}, s{sB}, {HF}""")
                self.silu_store(D+32*st+16*tt, 16, 12, sB)
        self.publish_h(sP, 8, vCNT)
        e("s_branch L_f_ffn1_done")
        a.label('L_f_ffn1_skip')
        self.lds_inc(C_X, 8, vCNT)
        e(f"s_mov_b32 s{sG}, 0")
        if self.o.get('pfW2',0):
            if self.o.get('quiet',0)==1: self.lds_spin(C_KV,1,8,vCNT)
            if self.o.get('quiet',0)==2: self.lds_spin(C_LS,4,8,vCNT)
            e(f"""s_and_b32 s{sH}, s{sT}, 3
                  s_mul_i32 s{sH}, s{sH}, 5
                  s_add_u32 s{sH}, s{sH}, s{sJ}
                  s_sub_u32 s{sH}, s{sH}, 3""")
            pc=self.o.get('pace',2)
            if self.o.get('pfF3',1):
                r0=((self.o.get('pfF',0)+self.o.get('pfF0',0))*2048)//1280
                self.l2_prefetch_flat(SRD_S, 2211840, vL, 8, 'a127', sG, 1, r0, None, ntk='ntF', midx=sH, nwg=20, pace=pc)
            self.l2_prefetch_flat(SRD_W2, 2211840, vL, 8, 'a127', sG, 1, midx=sH, nwg=20, pace=pc)
        self.stamp(3)
        a.label('L_f_ffn1_done')
        self.stamp(4)
        if self.stop=='s2': return
        self.ffn2()

    def ffn2(self):
        e=self.e; a=self.a
        vL=6; vCNT=1
        vW=[7,14,15]; vTR=13; vB=12; vW4=[2,3,4]
        ND=F2ND
        e("; ---- FFN2 ----")
        for i in range(3): self.w192_voff(vW[i], i, vL, False, 8, 9)
        for i in range(3): self.w192_voff(vW4[i], i, vL, True, 8, 9)
        e(f"""s_mul_i32 s{sRING}, s{sI}, {F2RING_SZ}
              s_add_u32 s{sRING}, s{sRING}, {XN}
              s_mul_i32 s{sOFF}, s{sI}, {27*20480}
              s_sub_u32 s{sOFF}, s{sOFF}, 20480
              v_lshlrev_b32 v{vB}, 4, v{vL}""")
        self.tr192_addr(vTR, vL, sRING, 8)
        self.lds_spin(C_X,8,8,vCNT)
        adv=f"s_add_u32 s{sOFF}, s{sOFF}, 20480"
        vm=Cnt(a,'vmcnt',63); lg=Cnt(a,'lgkmcnt',15)
        def dmas(s):
            for c in range(3):
                self.dma(SRD_W2, vW[c], sOFF, sRING, (s%ND)*3072+1024*c, adv if c==0 else None); vm.issue(('d',s))
        for s in range(ND): dmas(s)
        L=a.newlabel('Lhw')
        e(f"""s_cmp_lg_u32 s{sW}, 4
              s_cbranch_scc1 {L}""")
        e(f"""v_lshlrev_b32 v5, 7, v{vL}
              s_lshl_b32 s{sB}, s{sT}, 10
              s_add_u32 s{sB}, s{sB}, {HFLAG}""")
        self.flag_poll(5, 8, 8, sB)
        self.lds_set(C_HR, 1, 8, vCNT)
        a.label(L)
        self.lds_spin(C_HR,1,8,vCNT)
        self.stamp(5)
        e(f"""s_lshl_b32 s{sK}, s{sT}, 1
              s_mul_i32 s{sK}, s{sK}, 108
              s_mul_i32 s{sA}, s{sI}, 27
              s_add_u32 s{sK}, s{sK}, s{sA}
              s_lshl_b32 s{sK}, s{sK}, 10
              s_add_u32 s{sK}, s{sK}, {HF}
              s_add_u32 s{sV}, s{sK}, {108*1024}""")
        BB=64
        def bload(s):
            b=BB+8*(s%ND)
            e(f"""buffer_load_dwordx4 {vr(b,4)}, v{vB}, {srd(SRD_WS)}, s{sK} offen sc1
                  buffer_load_dwordx4 {vr(b+4,4)}, v{vB}, {srd(SRD_WS)}, s{sV} offen sc1
                  s_add_u32 s{sK}, s{sK}, 1024
                  s_add_u32 s{sV}, s{sV}, 1024""")
            vm.issue(('b',s)); vm.issue(('b',s))
        for s in range(ND): bload(s)
        def reads(s):
            A=16+12*(s&1); slot=(s%ND)*3072
            for c in range(3):
                e(f"ds_read_b64_tr_b16 v[{A+4*c}:{A+4*c+1}], v{vTR} offset:{slot+64*c}"); lg.issue(('r',s))
                e(f"ds_read_b64_tr_b16 v[{A+4*c+2}:{A+4*c+3}], v{vTR} offset:{slot+64*c+1536}"); lg.issue(('r',s))
        def rd(s,c):
            A=16+12*(s&1); slot=(s%ND)*3072
            e(f"ds_read_b64_tr_b16 v[{A+4*c}:{A+4*c+1}], v{vTR} offset:{slot+64*c}"); lg.issue(('r',s))
            e(f"ds_read_b64_tr_b16 v[{A+4*c+2}:{A+4*c+3}], v{vTR} offset:{slot+64*c+1536}"); lg.issue(('r',s))
        def dma1(s,c):
            if s<27:
                self.dma(SRD_W2, vW[c], sOFF, sRING, (s%ND)*3072+1024*c, adv if c==0 else None); vm.issue(('d',s))
            else:
                jj,sp=divmod(s-27,5)
                r0=jj*80+(20*sp if sp<4 else 0)
                mid=f"s_add_u32 s{sOFF}, s{sOFF2}, {r0*1280}" if c==0 else None
                self.dma(SRD_WO, (vW4 if sp==4 else vW)[c], sOFF, sRING, (s%ND)*3072+1024*c, mid); vm.issue(('d',s))
        e(f"s_mul_i32 s{sOFF2}, s{sI}, {160*1280}")
        vm.wait(('d',0)); reads(0)
        NST=27
        e(f"s_setprio {self.o.get('prioFl',3) if self.o.get('toggle',0) else self.o.get('prioF2',0)}")
        for s in range(NST):
            lg.wait(('r',s)); vm.wait(('b',s))
            A=16+12*(s&1); B=BB+8*(s%ND)
            mf=[]
            for c in range(3):
                for tt in range(2):
                    r=ar(16*(2*c+tt),16); cc=r if s>0 else '0'
                    mf.append(f"v_mfma_f32_32x32x16_bf16 {r}, {vr(A+4*c,4)}, {vr(B+4*tt,4)}, {cc}")
            fl=[]
            if s+1<NST:
                fl.append(lambda s=s: (vm.wait(('d',s+1)), rd(s+1,0)))
                fl.append(lambda s=s: rd(s+1,1))
                fl.append(lambda s=s: rd(s+1,2))
            for c in range(3): fl.append(lambda s=s,c=c: dma1(s+ND,c))
            self.weave(mf,fl,self.o.get('toggle',0))
            if s+ND<NST: bload(s+ND)
        e(f"s_setprio {self.o.get('prioFv',3)}")
        e("; MARK_F_END")
        self.stamp(6)
        if self.stop=='ffn2': return
        def frag(k,c):
            idx=3*k+c
            if idx<22: return ('v',16+4*idx)
            return ('a',96+4*(idx-22))
        e("s_waitcnt lgkmcnt(0)")
        for k in range(10):
            s=27+k
            vm.wait(('d',s))
            slot=(s%ND)*3072
            for c in range(3):
                t,r=frag(k,c)
                e(f"ds_read_b64_tr_b16 {t}[{r}:{r+1}], v{vTR} offset:{slot+64*c}"); lg.issue(('w',k))
                e(f"ds_read_b64_tr_b16 {t}[{r+2}:{r+3}], v{vTR} offset:{slot+64*c+1536}"); lg.issue(('w',k))
            if k+ND<10:
                lg.wait(('w',k))
                for c in range(3): dma1(s+ND,c)
            else: lg.wait(('w',k-1))
        e("s_waitcnt lgkmcnt(0)")
        self.lds_inc(C_F2, 8, vCNT)
        self.outproj(frag)

    def outproj(self, frag):
        e=self.e; a=self.a
        vL=6; vCNT=1; vB=12
        self.stamp(7)
        e(f"""v_lshlrev_b32 v5, 7, v{vL}
              s_lshl_b32 s{sB}, s{sT}, 3
              s_lshl_b32 s{sA}, s{sI}, 1
              s_add_u32 s{sB}, s{sB}, s{sA}
              s_lshl_b32 s{sB}, s{sB}, 7
              s_add_u32 s{sB}, s{sB}, {OFLAG}""")
        self.flag_poll(5, 8, 2, sB)
        self.stamp(8)
        e(f"""s_lshl_b32 s{sK}, s{sT}, 1
              s_mul_i32 s{sK}, s{sK}, 40
              s_mul_i32 s{sA}, s{sI}, 10
              s_add_u32 s{sK}, s{sK}, s{sA}
              s_lshl_b32 s{sK}, s{sK}, 10
              s_add_u32 s{sK}, s{sK}, {OF}
              s_add_u32 s{sV}, s{sK}, {40*1024}""")
        vm=Cnt(a,'vmcnt',63)
        BB=104; NB=3
        def bload(k):
            b=BB+8*(k%NB)
            e(f"""buffer_load_dwordx4 {vr(b,4)}, v{vB}, {srd(SRD_WS)}, s{sK} offen sc1
                  buffer_load_dwordx4 {vr(b+4,4)}, v{vB}, {srd(SRD_WS)}, s{sV} offen sc1
                  s_add_u32 s{sK}, s{sK}, 1024
                  s_add_u32 s{sV}, s{sV}, 1024""")
            vm.issue(('b',k)); vm.issue(('b',k))
        for k in range(NB): bload(k)
        for k in range(10):
            vm.wait(('b',k))
            B=BB+8*(k%NB)
            for c in range(3):
                t,r=frag(k,c)
                for tt in range(2):
                    acc=ar(16*(2*c+tt),16)
                    e(f"v_mfma_f32_32x32x16_bf16 {acc}, {t}[{r}:{r+3}], {vr(B+4*tt,4)}, {acc}")
            if k+NB<10: bload(k+NB)
        self.lds_spin(C_F2, 4, 8, vCNT)
        self.lds_spin(C_OS, 4, 8, vCNT)
        e(f"""v_and_b32 v8, 31, v{vL}
              v_mul_u32_u24 v9, {PSTR}, v8
              v_lshrrev_b32 v8, 5, v{vL}
              v_lshl_add_u32 v9, v8, 4, v9
              s_mul_i32 s{sA}, s{sI}, {PSZ}
              v_add_u32 v9, s{sA}, v9""")
        if RED: e(f"v_add_u32 v9, {RED}, v9")
        for c in range(3):
            for tt in range(2):
                for rq in range(4 if c<2 else 2):
                    e(f"ds_write_b128 v9, {ar(16*(2*c+tt)+4*rq,4)} offset:{tt*32*PSTR+(8*c+2*rq)*16}")
        e("s_waitcnt lgkmcnt(0)")
        self.stamp(9)

    def final(self):
        e=self.e; a=self.a
        self.mk_srd(SRD_OUT,P_OUT,2621440)
        e("; ---- final ----")
        def item(vit, first):
            e(f"""v_mul_u32_u24 v8, 6554, v{vit}
                  v_lshrrev_b32 v8, 16, v8
                  v_mul_u32_u24 v9, 10, v8
                  v_sub_u32 v9, v{vit}, v9
                  s_lshl_b32 s{sA}, s{sT}, 6
                  v_add_u32 v10, s{sA}, v8
                  v_mul_u32_u24 v10, 1280, v10
                  v_lshl_add_u32 v10, v9, 4, v10
                  s_mul_i32 s{sA}, s{sJ}, 160
                  v_add_u32 v10, s{sA}, v10
                  buffer_load_dwordx4 v[12:15], v10, {srd(SRD_X)}, 0 offen
                  v_mul_u32_u24 v11, {PSTR}, v8
                  v_lshl_add_u32 v11, v9, 5, v11""")
            if RED: e(f"v_add_u32 v11, {RED}, v11")
            if first:
                e("s_barrier")
                if not self.o.get('kv2'): self.stamp(10)
            for f in range(4):
                off=f*PSZ
                if off+16>65535:
                    e(f"v_add_u32 v7, {off}, v11")
                    e(f"ds_read_b128 {vr(16+8*f,4)}, v7\nds_read_b128 {vr(20+8*f,4)}, v7 offset:16")
                else:
                    e(f"ds_read_b128 {vr(16+8*f,4)}, v11 offset:{off}\nds_read_b128 {vr(20+8*f,4)}, v11 offset:{off+16}")
            e("s_waitcnt lgkmcnt(0)")
            for i in range(0,8,2):
                e(f"""v_pk_add_f32 v[{16+i}:{17+i}], v[{16+i}:{17+i}], v[{24+i}:{25+i}]
                      v_pk_add_f32 v[{32+i}:{33+i}], v[{32+i}:{33+i}], v[{40+i}:{41+i}]
                      v_pk_add_f32 v[{16+i}:{17+i}], v[{16+i}:{17+i}], v[{32+i}:{33+i}]""")
            e(f"""s_waitcnt vmcnt(0)
                  s_mov_b32 s{sB}, {hex(f2u(LN2))}""")
            for i in range(4):
                e(f"""v_lshlrev_b32 v48, 16, v{12+i}
                      v_and_b32 v49, 0xffff0000, v{12+i}
                      v_fma_f32 v48, v{16+2*i}, s{sB}, v48
                      v_fma_f32 v49, v{17+2*i}, s{sB}, v49
                      v_cvt_pk_bf16_f32 v{12+i}, v48, v49""")
            e(f"buffer_store_dwordx4 v[12:15], v10, {srd(SRD_OUT)}, 0 offen")
        item(0, True)
        e(f"""s_cmp_ge_u32 s{sW}, 2
              s_cbranch_scc1 L_fin
              v_add_u32 v2, 512, v0""")
        item(2, False)
        a.label('L_fin')
        if self.o.get('prof'):
            e("s_waitcnt vmcnt(0)")
            self.stamp(11)
            self.dump_stamps()

    def build(self):
        a=self.a; e=self.e
        self.prologue()
        e(f"""s_cmp_ge_u32 s{sW}, 4
              s_cbranch_scc1 L_role_f""")
        self.role_a()
        if self.stop=='s2':
            self.dump_q()
        else:
            (self.attention if self.o.get('attn',0) else self.attention_reg)()
            self.o_reduce()
        e("s_branch L_join")
        a.label('L_role_f')
        self.role_f()
        a.label('L_join')
        if self.stop is None:
            self.final()
        a.label('L_exit')
        e("s_endpgm")
        L=a.L
        if self.o.get('noFmfma') or self.o.get('noFmem') or self.o.get('noFlds') or self.o.get('noFprio'):
            out=[]; inside=False
            for l in L:
                if 'MARK_F_BEGIN' in l: inside=True
                if 'MARK_F_END' in l: inside=False
                t=l.strip()
                if inside and self.o.get('noFmfma') and t.startswith('v_mfma'): continue
                nm=self.o.get('noFmem',0)
                if inside and nm in (1,2) and t.startswith('buffer_load_dwordx4') and t.endswith(' lds'): continue
                if inside and nm in (1,3) and t.startswith('buffer_load_dwordx4') and (('s[48:51], s76' in t) or ('s[48:51], s77' in t)): continue
                if inside and self.o.get('noFlds') and t.startswith('ds_read_b64_tr'): continue
                if inside and self.o.get('noFprio') and t.startswith('s_setprio'): continue
                out.append(l)
            L=out
        lines,n=fix_hazards(L)
        return lines,n
    def dump_q(self):
        e=self.e
        self.lds_spin(C_Q,3,8,1)
        e(f"""v_lshlrev_b32 v9, 4, v6
              s_lshl_b32 s{sA}, s{sW}, 12
              v_add_u32 v9, s{sA}, v9
              v_add_u32 v10, {QF}, v9
              s_lshl_b32 s{sB}, s{sT}, 3
              s_add_u32 s{sB}, s{sB}, s{sJ}
              s_lshl_b32 s{sB}, s{sB}, 14
              s_add_u32 s{sB}, s{sB}, 0x1000000""")
        for i in range(4):
            e(f"""ds_read_b128 v[16:19], v10 offset:{1024*i}
                  s_waitcnt lgkmcnt(0)
                  buffer_store_dwordx4 v[16:19], v9, {srd(SRD_WS)}, s{sB} offen offset:{1024*i}
                  s_waitcnt vmcnt(0)""")

HEADER='''; Fused LayerNorm + MQA attention + SiLU FFN + residual, one persistent launch (256 workgroups, one per CU).
; Kernarg layout (88 bytes, ptrs only): A_x, A_wq, A_wk, A_wv, A_wo, B_x, B_w1, B_w2, d_out, d_debug, d_ws
; @launch grid=(256,1,1) block=(512,1,1) lds=%d
.amdgcn_target "amdgcn-amd-amdhsa--gfx950"
.text
.globl %s
.p2align 8
.type %s,@function
%s:
''' % (LDS_TOTAL,KNAME,KNAME,KNAME)
FOOTER='''
.section .rodata,"a"
.p2align 6
.amdhsa_kernel %s
  .amdhsa_next_free_vgpr 256
  .amdhsa_next_free_sgpr 102
  .amdhsa_accum_offset 128
  .amdhsa_group_segment_fixed_size 0
  .amdhsa_kernarg_size 88
  .amdhsa_user_sgpr_count 2
  .amdhsa_user_sgpr_kernarg_segment_ptr 1
  .amdhsa_system_sgpr_workgroup_id_x 1
.end_amdhsa_kernel
''' % KNAME

def generate(path, stop=None, opts=None):
    global WS_SIZE
    if stop=='s2': WS_SIZE=0x2000000
    g=G(stop,opts)
    lines,n=g.build()
    open(path,'w').write(HEADER+"\n".join(lines)+FOOTER)
    print("generated",path,len(lines),"lines; nops inserted:",n)

if __name__=="__main__":
    stop=None; path="parallel_sum__grouped_kv_mqa__dense_activation_silu__prompt.s"
    opts={}
    for x in sys.argv[1:]:
        if x.startswith("stop="): stop=x[5:]
        elif x.startswith("out="): path=x[4:]
        else:
            k,v=x.split("="); opts[k]=float(v) if '.' in v else int(v)
    generate(path,stop,opts)
```

```python
import sys, math, struct
from asmlib import Asm, Cnt, fix_hazards

KNAME="parallel_sum__grouped_kv_mqa__dense_activation_silu__prompt_kernel"
def f2u(x): return struct.unpack('<I',struct.pack('<f',x))[0]
LOG2E=1.4426950408889634; LN2=0.6931471805599453
XN=0; XNS=1296
RED=0
PSTR=336; PSZ=64*PSTR
QF=86016
RINGS=102400
NS_A=14; RING_A=RINGS; RING_A_SZ=NS_A*1024
NS_F=7;  RING_F=RINGS; RING_F_SZ=NS_F*2048
CNT=163712
RINGQ=112640; QCH=6144; QN=8
C_Q=0; C_H=4; C_NLO=8; C_NHI=12; C_KV=16; C_KMAX=20; C_HR=24; C_OW=28; C_OS=32; C_OR=36; C_X=40; C_F2=44; C_MX=48; C_XA=52; C_QL=56; C_ST=60; C_KW=64; C_LS=68; C_OP=72
ST=82944; CS=83456
LDS_TOTAL=163840
F2ND=5; F2RING_SZ=F2ND*3072
def ored(idx): return 102400+idx*6144 if idx<9 else 67584+(idx-9)*6144
KF=0; VF=0x20000; KVFLAG=0x40000; HFLAG=0x48000; OFLAG=0x50000; DBG=0x60000
OF=0x100000; HF=0x400000; WS_SIZE=0xB00000
OOB=0x80000000
sT=4; sJ=5; sW=6
P_X=8; P_WQ=10; P_WK=12; P_WV=14; P_WO=16; P_W1=20; P_W2=22; P_OUT=24; P_DBG=26; P_WS=28
SRD_X=32; SRD_S=36; SRD_W2=40; SRD_WO=44; SRD_WS=48; SRD_OUT=52
sOFF=56; sSTEP=57; sOFF2=58; sRING=59; sNLO=60; sNHI=61
sA=62; sB=63; sC=64; sD=65; sE=66; sF=67; sG=68; sH=69
sONES=70; sSPIN=71; sM=72
sHM=86; sK=76; sV=77; sLOOP=78; sCF1=79; sCF2=80; sTT=81; sP=82; sI=83; sQ=84; sR=85
def srd(n): return f"s[{n}:{n+3}]"
def vr(a,n=1): return f"v{a}" if n==1 else f"v[{a}:{a+n-1}]"
def ar(a,n=1): return f"a{a}" if n==1 else f"a[{a}:{a+n-1}]"

STOP=None
SPIN_MAX=400000

class G:
    def __init__(self, stop=None, opts=None):
        self.a=Asm(); self.stop=stop; self.o=opts or {}
    def e(self,s): self.a.e(s)
    def NT(self,k): return " nt" if self.o.get(k,{'ntX':0}.get(k,0)) else ""
    def mk_srd(self,dst,ptr,size):
        self.e(f"""s_mov_b32 s{dst}, s{ptr}
                   s_mov_b32 s{dst+1}, s{ptr+1}
                   s_mov_b32 s{dst+2}, {size}
                   s_mov_b32 s{dst+3}, 0x20000""")
    def lds_spin(self, off, val, vtmp, vcnt, sleep=None):
        L=self.a.newlabel('Lspin'); D=self.a.newlabel('Lspd')
        self.e(f"s_mov_b32 s{sSPIN}, {SPIN_MAX}")
        self.a.label(L)
        self.e(f"""ds_read_b32 v{vtmp}, v{vcnt} offset:{off}
                   s_waitcnt lgkmcnt(0)
                   v_readfirstlane_b32 s{sA}, v{vtmp}
                   s_cmp_ge_u32 s{sA}, {val}
                   s_cbranch_scc1 {D}
                   s_sleep {sleep or self.o.get('slp',1)}
                   s_sub_u32 s{sSPIN}, s{sSPIN}, 1
                   s_cmp_lg_u32 s{sSPIN}, 0
                   s_cbranch_scc1 {L}""")
        self.a.label(D)
    def lds_inc(self, off, vtmp, vcnt, rtn=False):
        self.e(f"""s_mov_b64 exec, 1
                   v_mov_b32 v{vtmp}, 1""")
        if rtn:
            self.e(f"""ds_add_rtn_u32 v{vtmp}, v{vcnt}, v{vtmp} offset:{off}
                       s_waitcnt lgkmcnt(0)
                       v_readfirstlane_b32 s{sA}, v{vtmp}""")
        else:
            self.e(f"ds_add_u32 v{vcnt}, v{vtmp} offset:{off}")
        self.e("s_mov_b64 exec, -1")
    def get_nonce(self, vtmp, vcnt):
        self.lds_spin(C_NLO,1,vtmp,vcnt)
        self.e(f"""ds_read_b64 v[{vtmp}:{vtmp+1}], v{vcnt} offset:{C_NLO}
                   s_waitcnt lgkmcnt(0)
                   v_readfirstlane_b32 s{sNLO}, v{vtmp}
                   v_readfirstlane_b32 s{sNHI}, v{vtmp+1}""")
    def flag_store(self, soff_sreg, vtmp, payload=None):
        self.e(f"""s_mov_b64 exec, 1
                   v_mov_b32 v{vtmp}, s{sNLO}
                   v_mov_b32 v{vtmp+1}, s{sNHI}
                   v_mov_b32 v{vtmp+2}, {('s%d'%payload) if payload is not None else 0}
                   v_mov_b32 v{vtmp+3}, 0
                   v_mov_b32 v{vtmp+4}, 0
                   buffer_store_dwordx4 v[{vtmp}:{vtmp+3}], v{vtmp+4}, {srd(SRD_WS)}, s{soff_sreg} offen sc1
                   s_mov_b64 exec, -1""")
    def flag_poll(self, voff, vtmp, nl, soff_sreg):
        L=self.a.newlabel('Lpoll'); D=self.a.newlabel('Lpd')
        mask=(1<<nl)-1
        self.e(f"""s_mov_b32 s{sSPIN}, {SPIN_MAX}
                   s_mov_b32 s{sM}, {mask & 0xffffffff}
                   s_mov_b32 s{sM+1}, {mask>>32}
                   s_mov_b64 exec, s[{sM}:{sM+1}]""")
        self.a.label(L)
        self.e(f"""buffer_load_dwordx4 v[{vtmp}:{vtmp+3}], v{voff}, {srd(SRD_WS)}, s{soff_sreg} offen sc1
                   s_waitcnt vmcnt(0)
                   v_cmp_ne_u32 vcc, s{sNLO}, v{vtmp}
                   v_cmp_ne_u32 s[{sM+2}:{sM+3}], s{sNHI}, v{vtmp+1}
                   s_or_b64 vcc, vcc, s[{sM+2}:{sM+3}]
                   s_cmp_eq_u64 vcc, 0
                   s_cbranch_scc1 {D}
                   s_sleep 1
                   s_sub_u32 s{sSPIN}, s{sSPIN}, 1
                   s_cmp_lg_u32 s{sSPIN}, 0
                   s_cbranch_scc1 {L}""")
        self.a.label(D)
        self.e("s_mov_b64 exec, -1")
    def lds_set(self, off, src, vtmp, vcnt):
        self.e(f"""v_mov_b32 v{vtmp}, {src}
                   s_mov_b64 exec, 1
                   ds_write_b32 v{vcnt}, v{vtmp} offset:{off}
                   s_mov_b64 exec, -1""")

    def weave(self, mfmas, fillers, toggle=False):
        n=len(mfmas); k=len(fillers); idx=0
        for i,m in enumerate(mfmas):
            if toggle: self.e(f"s_setprio {self.o.get('prioFm',0)}")
            self.e(m)
            if toggle: self.e(f"s_setprio {self.o.get('prioFl',3)}")
            upto=((i+1)*k+n-1)//n
            while idx<upto:
                fillers[idx](); idx+=1
    def stamp(self,i):
        if not self.o.get('prof'): return
        assert i<12
        op='s_memrealtime' if self.o.get('rt') else 's_memtime'
        self.e(f"""{op} s[100:101]
                   s_waitcnt lgkmcnt(0)
                   s_mov_b32 s{88+i}, s100""")
    def dump_stamps(self):
        if not self.o.get('prof'): return
        e=self.e
        e(f"""s_memrealtime s[100:101]
              s_waitcnt lgkmcnt(0)
              s_lshl_b32 s{sA}, s2, 3
              s_add_u32 s{sA}, s{sA}, s{sW}
              s_lshl_b32 s{sA}, s{sA}, 6
              s_add_u32 s{sA}, s{sA}, {DBG}
              s_mov_b64 exec, 1
              v_mov_b32 v8, 0""")
        for i in range(0,12,4):
            for k in range(4): e(f"v_mov_b32 v{12+k}, s{88+i+k}")
            e(f"buffer_store_dwordx4 v[12:15], v8, {srd(SRD_WS)}, s{sA} offen offset:{4*i}\ns_waitcnt vmcnt(0)")
        e(f"""v_mov_b32 v12, s18
              v_mov_b32 v13, s100
              s_getreg_b32 s{sB}, hwreg(HW_REG_XCC_ID)
              v_mov_b32 v14, s{sB}
              s_getreg_b32 s{sB}, hwreg(HW_REG_HW_ID)
              v_mov_b32 v15, s{sB}
              buffer_store_dwordx4 v[12:15], v8, {srd(SRD_WS)}, s{sA} offen offset:48
              s_waitcnt vmcnt(0)
              s_mov_b64 exec, -1""")

    def prologue(self):
        e=self.e
        e(f"""s_cmp_ge_u32 s2, 256
              s_cbranch_scc1 L_exit
              s_getpc_b64 s[30:31]
            L_pc0:
              s_load_dwordx16 s[8:23], s[0:1], 0
              s_load_dwordx4 s[24:27], s[0:1], 64
              s_load_dwordx2 s[28:29], s[0:1], 80
              s_and_b32 s3, s2, 7
              s_lshl_b32 s3, s3, 2
              s_lshr_b32 s{sT}, s2, 6
              s_add_u32 s{sT}, s{sT}, s3
              s_lshr_b32 s{sJ}, s2, 3
              s_and_b32 s{sJ}, s{sJ}, 7
              v_lshrrev_b32 v1, 6, v0
              v_lshrrev_b32 v2, 3, v0
              v_and_b32 v3, 7, v0
              v_readfirstlane_b32 s{sW}, v1
              s_lshl_b32 s3, s{sT}, 6
              v_add_u32 v4, s3, v2
              v_mul_u32_u24 v4, 1280, v4
              v_lshl_add_u32 v4, v3, 4, v4
              v_and_b32 v6, 63, v0""")
        if self.o.get('pfI',1):
            L=self.a.newlabel('Lpfi')
            e(f"""s_cmp_lg_u32 s{sW}, 7
                  s_cbranch_scc1 {L}
                  s_lshr_b32 s3, s2, 3
                  s_lshl_b32 s3, s3, 4
                  v_add_u32 v7, s3, v6
                  v_lshlrev_b32 v7, 7, v7
                  v_min_u32 v7, L_exit-L_pc0, v7
                  v_cmp_gt_u32 vcc, 16, v6
                  s_and_saveexec_b64 s[{sM}:{sM+1}], vcc
                  global_load_dword v126, v7, s[30:31]
                  s_mov_b64 exec, -1""")
            self.a.label(L)
        e("s_waitcnt lgkmcnt(0)")
        if self.o.get('prof'):
            e("s_memrealtime s[100:101]\ns_waitcnt lgkmcnt(0)\ns_mov_b32 s18, s100")
        self.stamp(0)
        if self.o.get('pfQ1',0):
            L=self.a.newlabel('Lpfq')
            e(f"""s_cmp_lt_u32 s{sW}, 4
                  s_cbranch_scc1 {L}
                  s_sub_u32 s{sI}, s{sW}, 4""")
            self.mk_srd(SRD_W2,P_WQ,819200)
            self.l2_prefetch_flat(SRD_W2, 819200, 6, 8, 127, sI, 4, ntk='ntQ')
            self.a.label(L)
        if self.o.get('pfQe',0):
            L=self.a.newlabel('Lpfe')
            e(f"""s_cmp_lg_u32 s{sW}, 6
                  s_cbranch_scc1 {L}""")
            self.mk_srd(SRD_W2,P_WQ,819200)
            e(f"""s_lshr_b32 s3, s2, 3
                  s_mul_i32 s3, s3, {40*128}
                  v_lshlrev_b32 v7, 7, v6
                  v_mov_b32 v8, {hex(OOB)}
                  v_cmp_gt_u32 vcc, 40, v6
                  v_cndmask_b32 v7, v8, v7, vcc
                  buffer_load_dword v125, v7, {srd(SRD_W2)}, s3 offen{self.NT('ntQ')}""")
            self.a.label(L)
        self.mk_srd(SRD_X,P_X,2621440)
        for i in range(10):
            e(f"buffer_load_dwordx4 v[{16+4*i}:{19+4*i}], v4, {srd(SRD_X)}, 0 offen offset:{128*i}{self.NT('ntX')}")
        if self.o.get('bar0',0): e("s_barrier")
        e(f"""v_mul_u32_u24 v5, {XNS}, v2
              v_lshl_add_u32 v5, v3, 4, v5
              v_mov_b32 v1, {CNT}
              s_mov_b32 s{sONES}, 0x3f803f80""")
        self.mk_srd(SRD_WS,P_WS,WS_SIZE)
        L=self.a.newlabel('Lw0')
        e(f"""s_cmp_lg_u32 s{sW}, 0
              s_cbranch_scc1 {L}
              v_mov_b32 v8, 0
              v_lshl_add_u32 v9, v6, 2, v1
              v_cmp_gt_u32 vcc, 32, v6
              s_and_saveexec_b64 s[{sM}:{sM+1}], vcc
              ds_write_b32 v9, v8
              s_mov_b64 exec, -1
              s_cmp_lg_u32 s2, 0
              s_cbranch_scc1 {L}
              s_memrealtime s[{sM}:{sM+1}]
              s_waitcnt lgkmcnt(0)
              s_or_b32 s{sM}, s{sM}, 1
              s_mov_b64 exec, 1
              v_mov_b32 v8, s{sM}
              v_mov_b32 v9, s{sM+1}
              v_mov_b32 v10, 0
              global_store_dwordx2 v10, v[8:9], s[{P_DBG}:{P_DBG+1}] sc1
              s_mov_b64 exec, -1""")
        self.a.label(L)

    def layernorm(self, extra=None, pre_barrier=None, prog=None):
        e=self.e
        self.stamp(1)
        e("v_mov_b32 v8, 0\nv_mov_b32 v9, 0\nv_mov_b32 v10, 0\nv_mov_b32 v11, 0")
        extra=list(extra or [])
        for r in range(40):
            if prog is not None and r%4==0: e(f"s_waitcnt vmcnt({prog+9-r//4})")
            e(f"v_dot2_f32_bf16 v{8+(r&1)}, v{16+r}, s{sONES}, v{8+(r&1)}")
            e(f"v_dot2_f32_bf16 v{10+(r&1)}, v{16+r}, v{16+r}, v{10+(r&1)}")
            if extra and r%3==2 and self.o.get('xstats',0): extra.pop(0)()
        e("v_add_f32 v8, v8, v9\nv_add_f32 v10, v10, v11")
        for m in ("quad_perm:[1,0,3,2]","quad_perm:[2,3,0,1]","row_half_mirror"):
            e(f"v_add_f32_dpp v8, v8, v8 {m} row_mask:0xf bank_mask:0xf")
            e(f"v_add_f32_dpp v10, v10, v10 {m} row_mask:0xf bank_mask:0xf")
        e(f"""v_mul_f32 v8, {hex(f2u(1/640))}, v8
              v_mul_f32 v10, {hex(f2u(1/640))}, v10
              v_fma_f32 v10, -v8, v8, v10
              v_max_f32 v10, 0, v10
              v_add_f32 v10, {hex(f2u(1e-5))}, v10
              v_rsq_f32 v10, v10
              v_mul_f32 v10, {hex(f2u(LOG2E))}, v10
              v_mul_f32 v12, v8, v10
              v_sub_f32 v12, 0, v12
              v_mov_b32 v11, v10
              v_mov_b32 v13, v12""")
        for i in range(10):
            for k in range(4):
                r=16+4*i+k
                t=56+ 2*((4*i+k)%4)
                e(f"""v_lshlrev_b32 v{t}, 16, v{r}
                      v_and_b32 v{t+1}, 0xffff0000, v{r}
                      v_pk_fma_f32 v[{t}:{t+1}], v[{t}:{t+1}], v[10:11], v[12:13]
                      v_cvt_pk_bf16_f32 v{r}, v{t}, v{t+1}""")
            e(f"ds_write_b128 v5, v[{16+4*i}:{19+4*i}] offset:{128*i}")
            if extra: extra.pop(0)()
        while extra: extra.pop(0)()
        if pre_barrier: e(pre_barrier)
        e("s_waitcnt lgkmcnt(0)\ns_barrier")
        self.stamp(2)

    def dma(self, srd_n, voff, soff_s, lds_base_s, lds_imm, mid=None, ntk='ntW'):
        self.e(f"s_add_u32 m0, s{lds_base_s}, {lds_imm}")
        if mid: self.e(mid)
        self.e(f"buffer_load_dwordx4 v{voff}, {srd(srd_n)}, s{soff_s} offen{self.NT(ntk)} lds")
    def stream_voff(self, vdst, vlane, s_rowstride, s_colbyte, s_npieces, vt):
        self.e(f"""v_lshrrev_b32 v{vt}, 2, v{vlane}
                   v_mul_lo_u32 v{vdst}, s{s_rowstride}, v{vt}
                   v_and_b32 v{vt}, 3, v{vlane}
                   v_lshl_add_u32 v{vdst}, v{vt}, 4, v{vdst}
                   v_add_u32 v{vdst}, s{s_colbyte}, v{vdst}
                   v_cmp_gt_u32 vcc, s{s_npieces}, v{vt}
                   v_mov_b32 v{vt}, {hex(OOB)}
                   v_cndmask_b32 v{vdst}, v{vt}, v{vdst}, vcc""")
    def tr_addr(self, vdst, vlane, hstride_rows, s_base, vt):
        self.e(f"""v_lshrrev_b32 v{vdst}, 5, v{vlane}
                   v_mul_u32_u24 v{vdst}, {hstride_rows*64}, v{vdst}
                   v_bfe_u32 v{vt}, v{vlane}, 2, 2
                   v_lshl_add_u32 v{vdst}, v{vt}, 6, v{vdst}
                   v_bfe_u32 v{vt}, v{vlane}, 4, 1
                   v_lshl_add_u32 v{vdst}, v{vt}, 5, v{vdst}
                   v_and_b32 v{vt}, 3, v{vlane}
                   v_lshl_add_u32 v{vdst}, v{vt}, 3, v{vdst}
                   v_add_u32 v{vdst}, s{s_base}, v{vdst}""")
    def w192_voff(self, vdst, i, vlane, special, t0, t1):
        e=self.e
        first=f"{64*i}" if isinstance(i,int) else i
        e(f"""v_add_u32 v{t0}, {first}, v{vlane}
              v_mul_u32_u24 v{vdst}, 5462, v{t0}
              v_lshrrev_b32 v{vdst}, 16, v{vdst}
              v_mul_u32_u24 v{t1}, 12, v{vdst}
              v_sub_u32 v{t0}, v{t0}, v{t1}""")
        if special:
            e(f"""v_lshrrev_b32 v{t1}, 2, v{vdst}
                  v_and_b32 v{vdst}, 3, v{vdst}
                  v_and_b32 v{t1+1}, 1, v{t1}
                  v_lshrrev_b32 v{t1}, 1, v{t1}
                  v_lshl_add_u32 v{t1}, v{t1}, 1, v{t1+1}
                  v_mul_u32_u24 v{t1}, 20, v{t1}
                  v_add3_u32 v{vdst}, v{vdst}, v{t1}, 16""")
        e(f"""v_mul_u32_u24 v{vdst}, 1280, v{vdst}
              v_lshl_add_u32 v{vdst}, v{t0}, 4, v{vdst}
              s_mul_i32 s{sA}, s{sJ}, 160
              v_add_u32 v{vdst}, s{sA}, v{vdst}
              v_cmp_gt_u32 vcc, 10, v{t0}
              v_mov_b32 v{t1}, {hex(OOB)}
              v_cndmask_b32 v{vdst}, v{t1}, v{vdst}, vcc""")
    def tr192_addr(self, vdst, vlane, s_base, vt):
        self.e(f"""v_lshrrev_b32 v{vdst}, 5, v{vlane}
                   v_lshlrev_b32 v{vdst}, 2, v{vdst}
                   v_bfe_u32 v{vt}, v{vlane}, 2, 2
                   v_add_u32 v{vdst}, v{vdst}, v{vt}
                   v_mul_u32_u24 v{vdst}, 192, v{vdst}
                   v_bfe_u32 v{vt}, v{vlane}, 4, 1
                   v_lshl_add_u32 v{vdst}, v{vt}, 5, v{vdst}
                   v_and_b32 v{vt}, 3, v{vlane}
                   v_lshl_add_u32 v{vdst}, v{vt}, 3, v{vdst}
                   v_add_u32 v{vdst}, s{s_base}, v{vdst}""")
    def l2_prefetch_rows(self, srd_n, s_rowstride, s_colbyte, vlane, vt, vdummy, nins=3, row0=0, rstep=160):
        self.e(f"""s_and_b32 s{sA}, s{sT}, 3
                   s_mul_i32 s{sA}, s{sA}, {rstep}
                   s_add_u32 s{sA}, s{sA}, {row0}
                   v_add_u32 v{vt}, s{sA}, v{vlane}
                   v_mul_lo_u32 v{vt}, s{s_rowstride}, v{vt}
                   v_add_u32 v{vt}, s{s_colbyte}, v{vt}
                   s_lshl_b32 s{sA}, s{s_rowstride}, 6
                   s_mov_b32 s{sB}, 0""")
        for i in range(nins):
            self.e(f"buffer_load_dword v{vdummy}, v{vt}, {srd(srd_n)}, s{sB} offen{self.NT('ntP')}")
            if i+1<nins: self.e(f"s_add_u32 s{sB}, s{sB}, s{sA}")
        return nins

    def l2_prefetch_flat(self, srd_n, nbytes, vlane, vt, vdummy, part, nparts, r0=0, r1=None, ntk='ntP', midx=None, nwg=32, pace=0):
        lines=(nbytes+127)//128
        per_round=nwg*nparts*64
        nr=(lines+per_round-1)//per_round
        if r1 is None: r1=nr
        r1=min(r1,nr)
        self.e(f"s_lshr_b32 s{sA}, s2, 3" if midx is None else f"s_mov_b32 s{sA}, s{midx}")
        self.e(f"""s_mul_i32 s{sA}, s{sA}, {nparts}
                   s_add_u32 s{sA}, s{sA}, s{part}
                   s_lshl_b32 s{sA}, s{sA}, 13
                   v_lshlrev_b32 v{vt}, 7, v{vlane}""")
        if r0: self.e(f"s_add_u32 s{sA}, s{sA}, {r0*per_round*128}")
        for r in range(r0,r1):
            self.e(f"buffer_load_dword {vdummy if isinstance(vdummy,str) else 'v%d'%vdummy}, v{vt}, {srd(srd_n)}, s{sA} offen{self.NT(ntk)}")
            if pace and (r-r0)%pace==pace-1: self.e("s_waitcnt vmcnt(0)")
            if r+1<r1: self.e(f"s_add_u32 s{sA}, s{sA}, {per_round*128}")
        return r1-r0

    def silu_store(self, D, T, voff, soff_s):
        e=self.e
        for half in range(2):
            b=D+8*half
            for i in range(8): e(f"v_exp_f32 v{T+i}, -v{b+i}")
            for i in range(0,8,2): e(f"v_pk_add_f32 v[{T+i}:{T+i+1}], v[{T+i}:{T+i+1}], 1.0 op_sel_hi:[1,0]")
            for i in range(8): e(f"v_rcp_f32 v{T+i}, v{T+i}")
            for i in range(0,8,2): e(f"v_pk_mul_f32 v[{b+i}:{b+i+1}], v[{b+i}:{b+i+1}], v[{T+i}:{T+i+1}]")
            for i in range(4): e(f"v_cvt_pk_bf16_f32 v{b+i}, v{b+2*i}, v{b+2*i+1}")
            e(f"buffer_store_dwordx4 v[{b}:{b+3}], v{voff}, {srd(SRD_WS)}, s{soff_s} offen offset:{1024*half} sc1")

    def kv_publish(self, soff_s, payload, vcnt):
        e=self.e; a=self.a
        if not self.o.get('kvfast',1):
            e("s_waitcnt vmcnt(0)")
            self.flag_store(soff_s, 8, payload=payload)
            self.lds_inc(C_KW, 8, vcnt)
            return
        e(f"s_mov_b32 s{sH}, 0")
        for p in range(10):
            L=a.newlabel('Lkvp')
            e(f"""s_cmp_lg_u32 s{sH}, 0
                  s_cbranch_scc1 {L}
                  s_getreg_b32 s{sG}, hwreg(HW_REG_IB_STS, 0, 4)
                  s_cmp_lg_u32 s{sG}, 0
                  s_cbranch_scc1 {L}
                  s_waitcnt vmcnt(0)""")
            self.flag_store(soff_s, 8, payload=payload)
            e(f"s_mov_b32 s{sH}, 1")
            a.label(L)
            e("s_barrier")
        L=a.newlabel('Lkvp')
        e(f"""s_cmp_lg_u32 s{sH}, 0
              s_cbranch_scc1 {L}
              s_waitcnt vmcnt(0)""")
        self.flag_store(soff_s, 8, payload=payload)
        a.label(L)
        self.lds_inc(C_KW, 8, vcnt)

    def publish_h(self, nprod_s, vt, vcnt):
        e=self.e
        e("s_waitcnt vmcnt(0)")
        self.lds_inc(C_H, vt, vcnt, rtn=True)
        L=self.a.newlabel('Lnh')
        e(f"""s_add_u32 s{sA}, s{sA}, 1
              s_cmp_lg_u32 s{sA}, s{nprod_s}
              s_cbranch_scc1 {L}""")
        e(f"""s_lshl_b32 s{sB}, s{sT}, 3
              s_add_u32 s{sB}, s{sB}, s{sJ}
              s_lshl_b32 s{sB}, s{sB}, 7
              s_add_u32 s{sB}, s{sB}, {HFLAG}""")
        self.flag_store(sB, vt)
        self.a.label(L)

    def role_a(self):
        e=self.e; a=self.a
        vL=6; vCNT=1
        vTR=14
        vB0=15
        WB=QF
        vBc=2; vAc=3; vAn=4
        D=64
        e(f"""; ---- role A ----
              v_and_b32 v8, 31, v{vL}
              v_mul_u32_u24 v{vB0}, {XNS}, v8
              v_lshrrev_b32 v8, 5, v{vL}
              v_lshl_add_u32 v{vB0}, v8, 4, v{vB0}
              s_cmp_eq_u32 s{sW}, 3
              s_cbranch_scc1 L_a_w3""")
        e(f"""v_lshrrev_b32 v{vTR}, 5, v{vL}
              v_lshlrev_b32 v{vTR}, 3, v{vTR}
              v_bfe_u32 v8, v{vL}, 2, 2
              v_add_u32 v{vTR}, v{vTR}, v8
              v_mul_u32_u24 v{vTR}, 192, v{vTR}
              v_bfe_u32 v8, v{vL}, 4, 1
              v_lshl_add_u32 v{vTR}, v8, 5, v{vTR}
              v_and_b32 v8, 3, v{vL}
              v_lshl_add_u32 v{vTR}, v8, 3, v{vTR}
              s_lshl_b32 s{sA}, s{sW}, 6
              s_add_u32 s{sA}, s{sA}, {RINGQ}
              v_add_u32 v{vTR}, s{sA}, v{vTR}""")
        self.layernorm(prog=0)
        def regs(i): return 16+4*(i%4), 32+8*(i%4)
        def s2(swap, resident, tag):
            for i in range(32): e(f"v_mov_b32 v{D+i}, 0")
            e(f"v_mov_b32 v{vBc}, v{vB0}")
            def bread(i,off):
                A,B=regs(i)
                for tt in range(2): e(f"ds_read_b128 {vr(B+4*tt,4)}, v{vBc} offset:{tt*32*XNS+off}")
            def aread(i,va,o0,o1):
                A,B=regs(i)
                e(f"ds_read_b64_tr_b16 v[{A}:{A+1}], v{va} offset:{o0}")
                e(f"ds_read_b64_tr_b16 v[{A+2}:{A+3}], v{va} offset:{o1}")
            if resident:
                e(f"v_mov_b32 v{vAc}, v{vTR}")
                bread(0,0); aread(0,vAc,0,160); bread(1,32); aread(1,vAc,640,800)
            else:
                bread(0,0); aread(0,vTR,0,768); bread(1,32); aread(1,vTR,3072,3072+768)
                e(f"s_mov_b32 s{sV}, {QCH}")
            e(f"s_mov_b32 s{sLOOP}, 10")
            a.label(f'L_s2_{tag}')
            for i in range(4):
                A,B=regs(i)
                mf=[]
                for tt in range(2):
                    acc=vr(D+16*tt,16)
                    mf.append(f"v_mfma_f32_32x32x16_bf16 {acc}, {vr(A,4)}, {vr(B+4*tt,4)}, {acc}" if not swap else f"v_mfma_f32_32x32x16_bf16 {acc}, {vr(B+4*tt,4)}, {vr(A,4)}, {acc}")
                if not resident and i%2==0:
                    e(f"""v_add_u32 v{vAn}, s{sV}, v{vTR}
                          s_add_u32 s{sV}, s{sV}, {QCH}
                          s_cmp_eq_u32 s{sV}, {QCH*QN}
                          s_cselect_b32 s{sV}, 0, s{sV}""")
                e("s_waitcnt lgkmcnt(4)")
                e(mf[0])
                bread(i+2,32*(i+2))
                e(mf[1])
                if resident: aread(i+2,vAc,640*(i+2),640*(i+2)+160)
                else:        aread(i+2,vAn,3072*(i%2),3072*(i%2)+768)
                if (i%2==1 and not (resident and self.o.get('kvfast',1))) or (i==3 and resident and self.o.get('kvfast',1)): e("s_barrier")
            e(f"v_add_u32 v{vBc}, 128, v{vBc}")
            if resident: e(f"v_add_u32 v{vAc}, 2560, v{vAc}")
            e(f"""s_sub_u32 s{sLOOP}, s{sLOOP}, 1
                  s_cmp_lg_u32 s{sLOOP}, 0
                  s_cbranch_scc1 L_s2_{tag}
                  s_waitcnt lgkmcnt(0)""")
            self.stamp(3)
            self.lds_inc(C_X, 8, vCNT)
            self.lds_inc(C_XA, 8, vCNT)
            if resident: self.lds_inc(C_KW, 8, vCNT)
        s2(False, False, 'w')
        e("s_branch L_a_ep_q")
        a.label('L_a_w3')
        e(f"""s_cmp_ge_u32 s{sJ}, 6
              s_cbranch_scc1 L_a_kv_start""")
        self.mk_srd(SRD_S,P_W1,2211840)
        e(f"s_mov_b32 s{sG}, 0")
        self.layernorm(prog=0)
        for p in range(20):
            if p%2==0 and p//2<self.o.get('pfF',0):
                self.l2_prefetch_flat(SRD_S, 2211840, vL, 8, 126, sG, 1, self.o.get('pfF0',0)+p//2, self.o.get('pfF0',0)+p//2+1, ntk='ntF')
            e("s_barrier")
        e("s_waitcnt vmcnt(0)")
        self.stamp(3)
        self.lds_inc(C_X, 8, vCNT)
        self.lds_inc(C_XA, 8, vCNT)
        e("s_branch L_a_ep_done")
        a.label('L_a_kv_start')
        e(f"""s_cmp_eq_u32 s{sJ}, 6
              s_cselect_b32 s{SRD_S}, s{P_WK}, s{P_WV}
              s_cselect_b32 s{SRD_S+1}, s{P_WK+1}, s{P_WV+1}
              s_mov_b32 s{SRD_S+2}, 25600
              s_mov_b32 s{SRD_S+3}, 0x20000
              v_lshlrev_b32 v8, 4, v{vL}""")
        for i in range(25):
            e(f"""s_mov_b32 m0, {WB+1024*i}
                  s_mov_b32 s{sOFF}, {1024*i}
                  buffer_load_dwordx4 v8, {srd(SRD_S)}, s{sOFF} offen lds""")
        e(f"""v_lshrrev_b32 v{vTR}, 5, v{vL}
              v_lshlrev_b32 v{vTR}, 3, v{vTR}
              v_bfe_u32 v8, v{vL}, 2, 2
              v_add_u32 v{vTR}, v{vTR}, v8
              v_mul_u32_u24 v{vTR}, 40, v{vTR}
              v_bfe_u32 v8, v{vL}, 4, 1
              v_lshl_add_u32 v{vTR}, v8, 5, v{vTR}
              v_and_b32 v8, 3, v{vL}
              v_lshl_add_u32 v{vTR}, v8, 3, v{vTR}
              v_add_u32 v{vTR}, {WB}, v{vTR}""")
        self.layernorm(pre_barrier="s_waitcnt vmcnt(0)", prog=25)
        e(f"""s_setprio 2
              s_cmp_eq_u32 s{sJ}, 7
              s_cbranch_scc1 L_a_s2_swapped""")
        s2(False, True, 'k')
        e("s_branch L_a_ep_k")
        a.label('L_a_s2_swapped')
        s2(True, True, 'v')
        e(f"""; ---- V epilogue ----
              v_and_b32 v8, 31, v{vL}
              v_cmp_gt_u32 vcc, 20, v8
              v_cndmask_b32 v10, 0, -1, vcc
              v_cmp_eq_u32 vcc, 20, v8
              v_mov_b32 v9, s{sONES}
              v_cndmask_b32 v11, 0, v9, vcc
              v_lshlrev_b32 v12, 4, v{vL}""")
        for tt in range(2):
            e(f"""s_lshl_b32 s{sB}, s{sT}, 1
                  s_add_u32 s{sB}, s{sB}, {tt}
                  s_lshl_b32 s{sB}, s{sB}, 11
                  s_add_u32 s{sB}, s{sB}, {VF}""")
            for fa in range(2):
                b=D+16*tt+8*fa
                for i in range(4): e(f"v_cvt_pk_bf16_f32 v{b+i}, v{b+2*i}, v{b+2*i+1}")
                for i in range(4): e(f"v_and_or_b32 v{b+i}, v{b+i}, v10, v11")
                e(f"buffer_store_dwordx4 v[{b}:{b+3}], v12, {srd(SRD_WS)}, s{sB} offen offset:{1024*fa} sc1")
        self.get_nonce(8, vCNT)
        e(f"""s_add_u32 s{sB}, s{sT}, 32
              s_lshl_b32 s{sB}, s{sB}, 7
              s_add_u32 s{sB}, s{sB}, {KVFLAG}""")
        self.kv_publish(sB, None, vCNT)
        e("s_branch L_a_ep_done")
        a.label('L_a_ep_k')
        e(f"""; ---- K epilogue ----
              v_lshlrev_b32 v12, 4, v{vL}
              v_lshlrev_b32 v13, 3, v{vL}
              v_cmp_gt_u32 s[{sM}:{sM+1}], 32, v{vL}
              v_mov_b32 v20, 0""")
        for tt in range(2):
            b=D+16*tt
            e(f"""s_lshl_b32 s{sB}, s{sT}, 1
                  s_add_u32 s{sB}, s{sB}, {tt}
                  s_mul_i32 s{sB}, s{sB}, 1536
                  s_add_u32 s{sB}, s{sB}, {KF}""")
            for i in range(6): e(f"v_cvt_pk_bf16_f32 v{b+i}, v{b+2*i}, v{b+2*i+1}")
            e(f"""v_cndmask_b32 v{b+4}, 0, v{b+4}, s[{sM}:{sM+1}]
                  v_cndmask_b32 v{b+5}, 0, v{b+5}, s[{sM}:{sM+1}]
                  v_mov_b32 v21, 0""")
            for i in range(6): e(f"v_dot2_f32_bf16 v21, v{b+i}, v{b+i}, v21")
            e(f"""v_mov_b32 v22, s{sONES}
                  v_mov_b32 v23, 0x3f80
                  v_cndmask_b32 v{b+4}, v22, v{b+4}, s[{sM}:{sM+1}]
                  v_cndmask_b32 v{b+5}, v23, v{b+5}, s[{sM}:{sM+1}]
                  buffer_store_dwordx4 v[{b}:{b+3}], v12, {srd(SRD_WS)}, s{sB} offen sc1
                  buffer_store_dwordx2 v[{b+4}:{b+5}], v13, {srd(SRD_WS)}, s{sB} offen offset:1024 sc1
                  v_mov_b32 v22, v21
                  v_permlane32_swap_b32 v22, v21
                  v_add_f32 v21, v21, v22
                  v_max_f32 v20, v20, v21""")
        for m in ("quad_perm:[1,0,3,2]","quad_perm:[2,3,0,1]","row_half_mirror","row_mirror"):
            e(f"v_max_f32_dpp v20, v20, v20 {m} row_mask:0xf bank_mask:0xf")
        e(f"""v_mov_b32 v21, v20
              v_permlane16_swap_b32 v21, v20
              v_max_f32 v20, v20, v21
              v_readfirstlane_b32 s{sC}, v20""")
        self.get_nonce(8, vCNT)
        e(f"""s_lshl_b32 s{sB}, s{sT}, 7
              s_add_u32 s{sB}, s{sB}, {KVFLAG}""")
        self.kv_publish(sB, sC, vCNT)
        e("s_branch L_a_ep_done")
        a.label('L_a_ep_q')
        Lq=a.newlabel('Lqw')
        e(f"""s_cmp_lt_u32 s{sJ}, 6
              s_cbranch_scc1 {Lq}""")
        self.lds_spin(C_KW,1,8,vCNT)
        a.label(Lq)
        c1=LN2/math.sqrt(20.0)
        e(f"""v_mov_b32 v10, {hex(f2u(c1))}
              v_mov_b32 v11, v10
              v_and_b32 v8, 31, v{vL}
              v_lshlrev_b32 v12, 4, v8
              v_add_u32 v12, {QF}, v12
              v_lshrrev_b32 v13, 5, v{vL}
              s_cmp_eq_u32 s{sW}, 1
              s_cbranch_scc1 L_a_ep_q1
              s_cmp_eq_u32 s{sW}, 2
              s_cbranch_scc1 L_a_ep_q2""")
        def qconst(g):
            head,dq=divmod(g,5)
            return head*4096 + ((dq&1)*512+(dq>>1)*8 if dq<4 else 1024)
        for c in range(3):
            if c>0: a.label(f'L_a_ep_q{c}')
            for rq in range(4 if c<2 else 2):
                C0=qconst(8*c+2*rq); C1=qconst(8*c+2*rq+1)
                e(f"""s_mov_b32 s{sA}, {C1-C0}
                      v_mad_i32_i24 v9, v13, s{sA}, v12""")
                for tt in range(2):
                    b=D+16*tt+4*rq
                    e(f"""v_pk_mul_f32 v[{b}:{b+1}], v[{b}:{b+1}], v[10:11]
                          v_pk_mul_f32 v[{b+2}:{b+3}], v[{b+2}:{b+3}], v[10:11]
                          v_cvt_pk_bf16_f32 v{b}, v{b}, v{b+1}
                          v_cvt_pk_bf16_f32 v{b+1}, v{b+2}, v{b+3}
                          ds_write_b64 v9, v[{b}:{b+1}] offset:{C0+2048*tt}""")
            e("s_waitcnt lgkmcnt(0)")
            self.lds_inc(C_Q, 8, vCNT)
            if c<2: e("s_branch L_a_ep_done")
        a.label('L_a_ep_done')
        e("s_setprio 0")
        self.stamp(4)

    def attention_reg(self):
        e=self.e; a=self.a
        vL=6; vCNT=1
        Q=12; S0=60; S1=76; P=92; KV=(100,114)
        vK16=2; vK8=3; vV16=4
        def Q1(ct): return vr(Q+6*ct,4)
        def Q2(ct): return vr(Q+6*ct+4,2)
        self.lds_spin(C_Q,3,8,vCNT)
        e(f"""v_and_b32 v8, 31, v{vL}
              v_lshlrev_b32 v9, 4, v{vL}
              v_add_u32 v9, {QF}, v9
              v_lshlrev_b32 v10, 4, v8
              v_add_u32 v10, {QF+1024}, v10""")
        for ct in range(8):
            e(f"ds_read_b128 {Q1(ct)}, v9 offset:{2048*ct}")
            e(f"ds_read_b64 {Q2(ct)}, v10 offset:{2048*ct}")
            if ct%4==3: e("s_waitcnt lgkmcnt(0)")
        self.lds_inc(C_QL,8,vCNT)
        e(f"v_cmp_gt_u32 s[{sHM}:{sHM+1}], 32, v{vL}")
        for i in range(128): e(f"v_accvgpr_write_b32 a{i}, 0")
        for ct in range(8):
            q2=Q+6*ct+4
            e(f"""v_cndmask_b32 v{q2}, 0, v{q2}, s[{sHM}:{sHM+1}]
                  v_cndmask_b32 v{q2+1}, 0, v{q2+1}, s[{sHM}:{sHM+1}]""")
        for ct in range(8):
            n=S0+ct
            e(f"v_mov_b32 v{n}, 0")
            for i in range(6): e(f"v_dot2_f32_bf16 v{n}, v{Q+6*ct+i}, v{Q+6*ct+i}, v{n}")
        for ct in range(8):
            n=S0+ct; t=S1+ct
            e(f"""v_mov_b32 v{t}, v{n}
                  v_permlane32_swap_b32 v{t}, v{n}
                  v_add_f32 v{n}, v{n}, v{t}""")
        e(f"""v_lshlrev_b32 v{vK16}, 4, v{vL}
              v_lshlrev_b32 v{vK8}, 3, v{vL}
              v_and_b32 v8, 31, v{vL}
              v_cmp_gt_u32 vcc, 21, v8
              v_mov_b32 v9, {hex(OOB)}
              v_cndmask_b32 v{vV16}, v9, v{vK16}, vcc""")
        L=a.newlabel('Lkvw')
        e(f"""s_cmp_lg_u32 s{sW}, 0
              s_cbranch_scc1 {L}""")
        self.get_nonce(8,vCNT)
        e(f"""v_lshlrev_b32 v5, 7, v{vL}
              s_mov_b32 s{sB}, {KVFLAG}""")
        self.flag_poll(5, 8, 64, sB)
        for m in ("quad_perm:[1,0,3,2]","quad_perm:[2,3,0,1]","row_half_mirror","row_mirror"):
            e(f"v_max_f32_dpp v10, v10, v10 {m} row_mask:0xf bank_mask:0xf")
        e(f"""v_mov_b32 v11, v10
              v_permlane16_swap_b32 v11, v10
              v_max_f32 v10, v10, v11
              v_mov_b32 v11, v10
              v_permlane32_swap_b32 v11, v10
              v_max_f32 v10, v10, v11
              s_mov_b64 exec, 1
              ds_write_b32 v{vCNT}, v10 offset:{C_KMAX}
              s_waitcnt lgkmcnt(0)
              v_mov_b32 v10, 1
              ds_write_b32 v{vCNT}, v10 offset:{C_KV}
              s_mov_b64 exec, -1""")
        a.label(L)
        self.lds_spin(C_KV,1,8,vCNT)
        e(f"""ds_read_b64 v[8:9], v{vCNT} offset:{C_NLO}
              s_waitcnt lgkmcnt(0)
              v_readfirstlane_b32 s{sNLO}, v8
              v_readfirstlane_b32 s{sNHI}, v9""")
        self.stamp(5)
        e(f"""s_lshl_b32 s{sA}, s{sW}, 4
              s_mul_i32 s{sK}, s{sA}, 1536
              s_add_u32 s{sK}, s{sK}, {KF}
              s_lshl_b32 s{sV}, s{sA}, 11
              s_add_u32 s{sV}, s{sV}, {VF}
              s_mov_b32 s{sQ}, s{sK}
              s_mov_b32 s{sR}, s{sV}""")
        def kvload(st):
            b=KV[st]
            e(f"""buffer_load_dwordx4 {vr(b,4)}, v{vK16}, {srd(SRD_WS)}, s{sK} offen sc1
                  buffer_load_dwordx2 {vr(b+4,2)}, v{vK8}, {srd(SRD_WS)}, s{sK} offen offset:1024 sc1
                  buffer_load_dwordx4 {vr(b+6,4)}, v{vV16}, {srd(SRD_WS)}, s{sV} offen sc1
                  buffer_load_dwordx4 {vr(b+10,4)}, v{vV16}, {srd(SRD_WS)}, s{sV} offen offset:1024 sc1
                  s_add_u32 s{sK}, s{sK}, 1536
                  s_add_u32 s{sV}, s{sV}, 2048""")
        kvload(0)
        e(f"""ds_read_b32 v8, v{vCNT} offset:{C_KMAX}
              s_waitcnt lgkmcnt(0)
              v_mov_b32 v9, 0""")
        for ct in range(8):
            n=S0+ct
            e(f"""v_mul_f32 v{n}, v{n}, v8
                  v_sqrt_f32 v{n}, v{n}
                  v_mul_f32 v{n}, {hex(f2u(1+2**-6))}, v{n}
                  v_max_f32 v9, v9, v{n}""")
        T=self.o.get('T',48.0)
        e(f"""s_mov_b32 s{sA}, {hex(f2u(T))}
              v_cmp_nge_f32 vcc, s{sA}, v9
              s_cmp_eq_u64 vcc, 0
              s_cbranch_scc1 L_a_shift""")
        for ct in range(8): e(f"v_mov_b32 v{P+ct}, {hex(f2u(-3.0e38))}")
        e(f"s_mov_b32 s{sLOOP}, 16")
        a.label('L_a_mx_loop')
        e("s_waitcnt vmcnt(0)")
        b=KV[0]
        for ct in range(8):
            e(f"""v_mfma_f32_32x32x16_bf16 {vr(S1,16)}, {vr(b,4)}, {Q1(ct)}, 0
                  v_mfma_f32_32x32x8_bf16 {vr(S1,16)}, {vr(b+4,2)}, {Q2(ct)}, {vr(S1,16)}""")
            for i in range(8): e(f"v_max3_f32 v{P+ct}, v{S1+2*i}, v{S1+2*i+1}, v{P+ct}")
        kvload(0)
        e(f"""s_sub_u32 s{sLOOP}, s{sLOOP}, 1
              s_cmp_lg_u32 s{sLOOP}, 0
              s_cbranch_scc1 L_a_mx_loop
              s_waitcnt vmcnt(0)""")
        self.lds_spin(C_QL,4,10,vCNT)
        e(f"""s_lshl_b32 s{sA}, s{sW}, 11
              s_add_u32 s{sA}, s{sA}, {QF}
              v_lshlrev_b32 v8, 2, v{vL}
              v_add_u32 v9, s{sA}, v8
              v_add_u32 v8, {QF}, v8""")
        for ct in range(8):
            n=P+ct
            e(f"""v_mov_b32 v10, v{n}
                  v_permlane32_swap_b32 v10, v{n}
                  v_max_f32 v{n}, v{n}, v10
                  ds_write_b32 v9, v{n} offset:{256*ct}""")
        e("s_waitcnt lgkmcnt(0)")
        self.lds_inc(C_MX,10,vCNT)
        self.lds_spin(C_MX,4,10,vCNT)
        for ct in range(8):
            for w in range(4): e(f"ds_read_b32 v{S1+w}, v8 offset:{2048*w+256*ct}")
            e(f"""s_waitcnt lgkmcnt(0)
                  v_max3_f32 v{S0+ct}, v{S1}, v{S1+1}, v{S1+2}
                  v_max_f32 v{S0+ct}, v{S0+ct}, v{S1+3}""")
        e(f"""s_mov_b32 s{sK}, s{sQ}
              s_mov_b32 s{sV}, s{sR}""")
        kvload(0)
        a.label('L_a_shift')
        for ct in range(8):
            n=S0+ct; q2=Q+6*ct+4
            e(f"""v_sub_f32 v{n}, 0, v{n}
                  v_cvt_pk_bf16_f32 v8, v{n}, v{n}
                  v_lshlrev_b32 v8, 16, v8
                  v_sub_f32 v9, v{n}, v8
                  v_cvt_pk_bf16_f32 v10, v{n}, v9
                  v_and_b32 v8, 0xffff0000, v10
                  v_sub_f32 v9, v9, v8
                  v_cvt_pk_bf16_f32 v11, v9, 0
                  v_cndmask_b32 v{q2}, v10, v{q2}, s[{sHM}:{sHM+1}]
                  v_cndmask_b32 v{q2+1}, v11, v{q2+1}, s[{sHM}:{sHM+1}]""")
        for i in range(4): e(f"v_mov_b32 v{P+4+i}, 0")
        for i in range(4): e(f"v_mov_b32 v{KV[1]+10+i}, 0")
        e("s_waitcnt vmcnt(0)")
        self.lds_inc(C_LS, 8, vCNT)
        b=KV[0]
        e(f"""v_mfma_f32_32x32x16_bf16 {vr(S0,16)}, {vr(b,4)}, {Q1(0)}, 0
              v_mfma_f32_32x32x8_bf16 {vr(S0,16)}, {vr(b+4,2)}, {Q2(0)}, {vr(S0,16)}
              s_mov_b32 s{sLOOP}, 8
              s_setprio {self.o.get('prioA',1)}
              s_nop 9""")
        self.stamp(6)
        prog=self.o.get('oprog',0)
        def owrite(tile):
            d,tt=divmod(tile,2)
            L=a.newlabel('Low')
            e(f"""s_cmp_eq_u32 s{sW}, {d}
                  s_cbranch_scc1 {L}
                  s_cmp_gt_u32 s{sW}, {d}
                  s_cselect_b32 s{sA}, 1, 0
                  s_sub_u32 s{sA}, s{sW}, s{sA}
                  s_mul_i32 s{sA}, s{sA}, 6144
                  s_add_u32 s{sA}, s{sA}, {ored(3*d)}
                  v_add_u32 v5, s{sA}, v{vK16}""")
            for q in range(3): e(f"ds_write_b128 v5, {ar(16*tile+4*q,4)} offset:{(tt*3+q)*1024}")
            a.label(L)
        def keytile(st, last):
            cur=KV[st]; oth=KV[st^1]
            for ct in range(8):
                S=S0 if ct%2==0 else S1; N=S1 if ct%2==0 else S0
                nct=(ct+1)%8; kb=cur if ct<7 else oth
                pct=(ct+7)%8; vb=cur if ct>0 else oth
                ex=lambda i: f"v_exp_f32 v{S+i}, v{S+i}"
                cv=lambda i: f"v_cvt_pk_bf16_f32 v{P+i}, v{S+2*i}, v{S+2*i+1}"
                qk1=f"v_mfma_f32_32x32x16_bf16 {vr(N,16)}, {vr(kb,4)}, {Q1(nct)}, 0"
                qk2=f"v_mfma_f32_32x32x8_bf16 {vr(N,16)}, {vr(kb+4,2)}, {Q2(nct)}, {vr(N,16)}"
                pvb=f"v_mfma_f32_32x32x16_bf16 {ar(16*pct,16)}, {vr(vb+10,4)}, {vr(P+4,4)}, {ar(16*pct,16)}"
                pva=f"v_mfma_f32_32x32x16_bf16 {ar(16*ct,16)}, {vr(cur+6,4)}, {vr(P,4)}, {ar(16*ct,16)}"
                noqk = last and ct==7
                if ct==7 and not noqk: e("s_waitcnt vmcnt(0)")
                dbg=self.o.get('adbg',0)
                def em(x):
                    if dbg==1 and x in (pva,pvb): return
                    if dbg==2 and x==qk2: return
                    if dbg==3 and x.startswith('v_exp'): x="v_mov_b32"+x[len('v_exp_f32'):]
                    if dbg==4 and x.startswith('v_mfma'): return
                    if dbg==5 and x.startswith('v_cvt'): return
                    e(x)
                for x in [qk1,ex(0),ex(1),ex(2),ex(3),cv(0),cv(1),qk2,ex(4),ex(5),ex(6),ex(7),cv(2),cv(3),pvb]:
                    if noqk and x in (qk1,qk2): continue
                    em(x)
                if ct==0 and not last: kvload(st^1)
                for x in [ex(8),ex(9),ex(10),ex(11),cv(4),cv(5),pva,ex(12),ex(13),ex(14),ex(15),cv(6),cv(7)]: em(x)
                if last and prog and ct>=1: owrite(ct-1)
        nloop=self.o.get('aloop',8)-1
        e(f"s_mov_b32 s{sLOOP}, {nloop}")
        e(".p2align 6")
        a.label('L_a_loop')
        keytile(0,False); keytile(1,False)
        e(f"""s_sub_u32 s{sLOOP}, s{sLOOP}, 1
              s_cmp_lg_u32 s{sLOOP}, 0
              s_cbranch_scc1 L_a_loop""")
        if prog: self.lds_spin(C_X,8,8,vCNT)
        keytile(0,False); keytile(1,True)
        e(f"""v_mfma_f32_32x32x16_bf16 {ar(112,16)}, {vr(KV[1]+10,4)}, {vr(P+4,4)}, {ar(112,16)}
              s_setprio 0""")
        if prog: owrite(7)
        self.stamp(7)

    def attention(self):
        e=self.e; a=self.a
        vL=6; vCNT=1
        Q=12
        NB=60
        S=(24,40); P=(56,64); KV=(72,86,100)
        vK16=2; vK8=3; vV16=4; vQ1=5; vQ2=7
        def Q1(ct): return vr(Q+6*ct,4)
        def Q2(ct): return vr(Q+6*ct+4,2)
        self.lds_spin(C_Q,3,8,vCNT)
        e(f"""v_and_b32 v8, 31, v{vL}
              v_lshlrev_b32 v9, 4, v{vL}
              v_add_u32 v9, {QF}, v9
              v_lshlrev_b32 v10, 4, v8
              v_add_u32 v10, {QF+1024}, v10""")
        for ct in range(8):
            e(f"ds_read_b128 {Q1(ct)}, v9 offset:{2048*ct}")
            e(f"ds_read_b64 {Q2(ct)}, v10 offset:{2048*ct}")
            if ct%4==3: e("s_waitcnt lgkmcnt(0)")
        e(f"v_cmp_gt_u32 s[{sHM}:{sHM+1}], 32, v{vL}")
        for i in range(128): e(f"v_accvgpr_write_b32 a{i}, 0")
        for ct in range(8):
            q2=Q+6*ct+4
            e(f"""v_cndmask_b32 v{q2}, 0, v{q2}, s[{sHM}:{sHM+1}]
                  v_cndmask_b32 v{q2+1}, 0, v{q2+1}, s[{sHM}:{sHM+1}]""")
        for ct in range(8):
            n=NB+ct
            e(f"v_mov_b32 v{n}, 0")
            for i in range(6): e(f"v_dot2_f32_bf16 v{n}, v{Q+6*ct+i}, v{Q+6*ct+i}, v{n}")
        for ct in range(8):
            n=NB+ct; t=76+ct
            e(f"""v_mov_b32 v{t}, v{n}
                  v_permlane32_swap_b32 v{t}, v{n}
                  v_add_f32 v{n}, v{n}, v{t}""")
        e(f"""v_lshlrev_b32 v{vK16}, 4, v{vL}
              v_lshlrev_b32 v{vK8}, 3, v{vL}
              v_and_b32 v8, 31, v{vL}
              v_cmp_gt_u32 vcc, 21, v8
              v_mov_b32 v11, {hex(OOB)}
              v_cndmask_b32 v{vV16}, v11, v{vK16}, vcc
              v_lshrrev_b32 v8, 5, v{vL}
              v_lshl_add_u32 v{vQ2}, v8, 3, v10""")
        L=a.newlabel('Lkvw')
        e(f"""s_cmp_lg_u32 s{sW}, 0
              s_cbranch_scc1 {L}""")
        self.get_nonce(8,vCNT)
        e(f"""v_lshlrev_b32 v5, 7, v{vL}
              s_mov_b32 s{sB}, {KVFLAG}""")
        self.flag_poll(5, 8, 64, sB)
        for m in ("quad_perm:[1,0,3,2]","quad_perm:[2,3,0,1]","row_half_mirror","row_mirror"):
            e(f"v_max_f32_dpp v10, v10, v10 {m} row_mask:0xf bank_mask:0xf")
        e(f"""v_mov_b32 v11, v10
              v_permlane16_swap_b32 v11, v10
              v_max_f32 v10, v10, v11
              v_mov_b32 v11, v10
              v_permlane32_swap_b32 v11, v10
              v_max_f32 v10, v10, v11
              s_mov_b64 exec, 1
              ds_write_b32 v{vCNT}, v10 offset:{C_KMAX}
              s_waitcnt lgkmcnt(0)
              v_mov_b32 v10, 1
              ds_write_b32 v{vCNT}, v10 offset:{C_KV}
              s_mov_b64 exec, -1""")
        a.label(L)
        e(f"""v_lshlrev_b32 v{vQ1}, 4, v{vL}
              v_add_u32 v{vQ1}, {QF}, v{vQ1}""")
        self.lds_spin(C_KV,1,8,vCNT)
        e(f"""ds_read_b64 v[8:9], v{vCNT} offset:{C_NLO}
              s_waitcnt lgkmcnt(0)
              v_readfirstlane_b32 s{sNLO}, v8
              v_readfirstlane_b32 s{sNHI}, v9""")
        self.stamp(5)
        e(f"""s_lshl_b32 s{sA}, s{sW}, 4
              s_mul_i32 s{sK}, s{sA}, 1536
              s_add_u32 s{sK}, s{sK}, {KF}
              s_lshl_b32 s{sV}, s{sA}, 11
              s_add_u32 s{sV}, s{sV}, {VF}
              s_mov_b32 s{sQ}, s{sK}""")
        def kvload(st):
            b=KV[st]
            e(f"""buffer_load_dwordx4 {vr(b,4)}, v{vK16}, {srd(SRD_WS)}, s{sK} offen sc1
                  buffer_load_dwordx2 {vr(b+4,2)}, v{vK8}, {srd(SRD_WS)}, s{sK} offen offset:1024 sc1
                  buffer_load_dwordx4 {vr(b+6,4)}, v{vV16}, {srd(SRD_WS)}, s{sV} offen sc1
                  buffer_load_dwordx4 {vr(b+10,4)}, v{vV16}, {srd(SRD_WS)}, s{sV} offen offset:1024 sc1
                  s_add_u32 s{sK}, s{sK}, 1536
                  s_add_u32 s{sV}, s{sV}, 2048""")
        kvload(0); kvload(1)
        e(f"""ds_read_b32 v8, v{vCNT} offset:{C_KMAX}
              s_waitcnt lgkmcnt(0)
              v_mov_b32 v9, 0""")
        for ct in range(8):
            n=NB+ct
            e(f"""v_mul_f32 v{n}, v{n}, v8
                  v_sqrt_f32 v{n}, v{n}
                  v_mul_f32 v{n}, {hex(f2u(1+2**-6))}, v{n}
                  v_max_f32 v9, v9, v{n}""")
        T=self.o.get('T',48.0)
        e(f"""s_mov_b32 s{sA}, {hex(f2u(T))}
              v_cmp_nge_f32 vcc, s{sA}, v9
              s_cmp_eq_u64 vcc, 0
              s_cbranch_scc1 L_a_shift""")
        ST_=100; KB=116
        for ct in range(8): e(f"v_mov_b32 v{NB+ct}, {hex(f2u(-3.0e38))}")
        e(f"s_mov_b32 s{sLOOP}, 16")
        a.label('L_a_mx_loop')
        e(f"""buffer_load_dwordx4 {vr(KB,4)}, v{vK16}, {srd(SRD_WS)}, s{sQ} offen sc1
              buffer_load_dwordx2 {vr(KB+4,2)}, v{vK8}, {srd(SRD_WS)}, s{sQ} offen offset:1024 sc1
              s_add_u32 s{sQ}, s{sQ}, 1536
              s_waitcnt vmcnt(0)""")
        for ct in range(8):
            e(f"""v_mfma_f32_32x32x16_bf16 {vr(ST_,16)}, {vr(KB,4)}, {Q1(ct)}, 0
                  v_mfma_f32_32x32x8_bf16 {vr(ST_,16)}, {vr(KB+4,2)}, {Q2(ct)}, {vr(ST_,16)}""")
            for i in range(8): e(f"v_max3_f32 v{NB+ct}, v{ST_+2*i}, v{ST_+2*i+1}, v{NB+ct}")
        e(f"""s_sub_u32 s{sLOOP}, s{sLOOP}, 1
              s_cmp_lg_u32 s{sLOOP}, 0
              s_cbranch_scc1 L_a_mx_loop""")
        MX0=82944; MX3=161792
        e(f"""s_lshl_b32 s{sA}, s{sW}, 10
              s_add_u32 s{sA}, s{sA}, {MX0}
              s_cmp_eq_u32 s{sW}, 3
              s_cselect_b32 s{sA}, {MX3}, s{sA}
              v_and_b32 v8, 31, v{vL}
              v_lshlrev_b32 v8, 2, v8
              v_add_u32 v9, s{sA}, v8""")
        for ct in range(8):
            n=NB+ct
            e(f"""v_mov_b32 v10, v{n}
                  v_permlane32_swap_b32 v10, v{n}
                  v_max_f32 v{n}, v{n}, v10
                  ds_write_b32 v9, v{n} offset:{128*ct}""")
        e("s_waitcnt lgkmcnt(0)")
        self.lds_inc(C_MX,10,vCNT)
        self.lds_spin(C_MX,4,10,vCNT)
        e(f"""v_add_u32 v9, {MX0}, v8
              v_add_u32 v8, {MX3}, v8""")
        for ct in range(8):
            for w in range(3): e(f"ds_read_b32 v{ST_+w}, v9 offset:{1024*w+128*ct}")
            e(f"""ds_read_b32 v{ST_+3}, v8 offset:{128*ct}
                  s_waitcnt lgkmcnt(0)
                  v_max3_f32 v{NB+ct}, v{ST_}, v{ST_+1}, v{ST_+2}
                  v_max_f32 v{NB+ct}, v{NB+ct}, v{ST_+3}""")
        a.label('L_a_shift')
        for ct in range(8):
            n=NB+ct; q2=Q+6*ct+4
            e(f"""v_sub_f32 v{n}, 0, v{n}
                  v_cvt_pk_bf16_f32 v8, v{n}, v{n}
                  v_lshlrev_b32 v8, 16, v8
                  v_sub_f32 v9, v{n}, v8
                  v_cvt_pk_bf16_f32 v10, v{n}, v9
                  v_and_b32 v8, 0xffff0000, v10
                  v_sub_f32 v9, v9, v8
                  v_cvt_pk_bf16_f32 v11, v9, 0
                  v_cndmask_b32 v{q2}, v10, v{q2}, s[{sHM}:{sHM+1}]
                  v_cndmask_b32 v{q2+1}, v11, v{q2+1}, s[{sHM}:{sHM+1}]
                  ds_write_b64 v{vQ2}, v[{q2}:{q2+1}] offset:{2048*ct}""")
        for i in range(8): e(f"v_mov_b32 v{P[1]+i}, 0")
        for i in range(8): e(f"v_mov_b32 v{KV[2]+6+i}, 0")
        e("s_waitcnt vmcnt(4) lgkmcnt(0)")
        self.lds_inc(C_LS, 8, vCNT)
        b=KV[0]
        e(f"""v_mfma_f32_32x32x16_bf16 {vr(S[0],16)}, {vr(b,4)}, {vr(12,4)}, 0
              v_mfma_f32_32x32x8_bf16 {vr(S[0],16)}, {vr(b+4,2)}, {vr(16,2)}, {vr(S[0],16)}
              s_mov_b32 s{sLOOP}, {self.o.get('aloop',5)}
              s_setprio {self.o.get('prioA',1)}
              s_nop 9""")
        self.stamp(6)
        if self.o.get('kvstall'): e("s_mov_b32 s19, 0")
        def q1(st): return vr(12+6*st,4)
        def q2(st): return vr(16+6*st,2)
        def keytile(k3, last):
            cur=KV[k3]; nxt=KV[(k3+1)%3]; prv=KV[(k3+2)%3]
            for ct in range(8):
                Sc=S[ct%2]; N=S[(ct+1)%2]; Pc=P[ct%2]; Pp=P[(ct+1)%2]
                kb=cur if ct<7 else nxt
                pct=(ct+7)%8; vb=cur if ct>0 else prv
                qs=(ct+1)%2
                ex=lambda i: f"v_exp_f32 v{Sc+i}, v{Sc+i}"
                cv=lambda i: f"v_cvt_pk_bf16_f32 v{Pc+i}, v{Sc+2*i}, v{Sc+2*i+1}"
                qk1=f"v_mfma_f32_32x32x16_bf16 {vr(N,16)}, {vr(kb,4)}, {q1(qs)}, 0"
                qk2=f"v_mfma_f32_32x32x8_bf16 {vr(N,16)}, {vr(kb+4,2)}, {q2(qs)}, {vr(N,16)}"
                pva=f"v_mfma_f32_32x32x16_bf16 {ar(16*pct,16)}, {vr(vb+6,4)}, {vr(Pp,4)}, {ar(16*pct,16)}"
                pvb=f"v_mfma_f32_32x32x16_bf16 {ar(16*pct,16)}, {vr(vb+10,4)}, {vr(Pp+4,4)}, {ar(16*pct,16)}"
                doqk = not (last and ct==7)
                if doqk:
                    if ct==7 and self.o.get('kvstall'):
                        e("""s_memtime s[100:101]
                             s_waitcnt lgkmcnt(0)
                             s_mov_b32 s3, s100
                             s_waitcnt vmcnt(4)
                             s_memtime s[100:101]
                             s_waitcnt lgkmcnt(0)
                             s_sub_u32 s3, s100, s3
                             s_add_u32 s19, s19, s3""")
                    elif ct==7: e("s_waitcnt vmcnt(4) lgkmcnt(0)")
                    else:     e("s_waitcnt lgkmcnt(0)")
                    e(qk1)
                for i in range(0,3): e(ex(i))
                if doqk: e(qk2)
                if not (last and ct>=6):
                    c2=(ct+2)%8
                    e(f"ds_read_b128 {q1(ct%2)}, v{vQ1} offset:{2048*c2}")
                    e(f"ds_read_b64 {q2(ct%2)}, v{vQ2} offset:{2048*c2}")
                for i in range(3,6): e(ex(i))
                e(pva)
                for i in range(6,9): e(ex(i))
                e(pvb)
                if ct==0 and not last: kvload((k3+2)%3)
                for i in range(9,16): e(ex(i))
                for i in range(8): e(cv(i))
        e(".p2align 6")
        a.label('L_a_loop')
        for k3 in range(3): keytile(k3, False)
        e(f"""s_sub_u32 s{sLOOP}, s{sLOOP}, 1
              s_cmp_lg_u32 s{sLOOP}, 0
              s_cbranch_scc1 L_a_loop""")
        keytile(0, True)
        e(f"""v_mfma_f32_32x32x16_bf16 {ar(112,16)}, {vr(KV[0]+6,4)}, {vr(P[1],4)}, {ar(112,16)}
              v_mfma_f32_32x32x16_bf16 {ar(112,16)}, {vr(KV[0]+10,4)}, {vr(P[1]+4,4)}, {ar(112,16)}
              s_setprio 0
              s_waitcnt vmcnt(0)""")
        self.stamp(7)
        if self.o.get('kvstall'): e("s_add_u32 s96, s19, s88")

    def o_reduce(self):
        e=self.e; a=self.a
        vL=6; vCNT=1
        e("; ---- O reduction ----")
        prog=self.o.get('oprog',0) and not self.o.get('attn',0)
        if not prog: self.lds_spin(C_X,8,8,vCNT)
        e(f"v_lshlrev_b32 v9, 4, v{vL}")
        for w in range(4):
            if w>0: a.label(f'L_a_ow{w}')
            if w==0:
                e(f"""s_cmp_eq_u32 s{sW}, 1
                      s_cbranch_scc1 L_a_ow1
                      s_cmp_eq_u32 s{sW}, 2
                      s_cbranch_scc1 L_a_ow2
                      s_cmp_eq_u32 s{sW}, 3
                      s_cbranch_scc1 L_a_ow3""")
            for d in range(4):
                if d==w or prog: continue
                slot=w-(1 if w>d else 0)
                base=ored(d*3+slot)
                e(f"v_add_u32 v10, {base}, v9")
                for tt in range(2):
                    for q in range(3):
                        e(f"ds_write_b128 v10, {ar(16*(2*d+tt)+4*q,4)} offset:{(tt*3+q)*1024}")
            for tt in range(2):
                for i in range(12): e(f"v_accvgpr_read_b32 v{16+12*tt+i}, a{16*(2*w+tt)+i}")
            if w<3: e("s_branch L_a_ow_done")
        a.label('L_a_ow_done')
        e("s_waitcnt lgkmcnt(0)")
        self.lds_inc(C_OW,8,vCNT)
        self.lds_spin(C_OW,4,8,vCNT)
        if not self.o.get('kvstall'): self.stamp(8)
        e(f"""s_mul_i32 s{sA}, s{sW}, {3*6144}
              s_add_u32 s{sA}, s{sA}, {ored(0)}
              s_cmp_eq_u32 s{sW}, 3
              s_cselect_b32 s{sA}, {ored(9)}, s{sA}
              v_add_u32 v10, s{sA}, v9""")
        for slot in range(2):
            for k in range(6): e(f"ds_read_b128 {vr(40+24*slot+4*k,4)}, v10 offset:{slot*6144+k*1024}")
        e("s_waitcnt lgkmcnt(6)")
        for k in range(6): e(f"ds_read_b128 {vr(88+4*k,4)}, v10 offset:{2*6144+k*1024}")
        for i in range(0,24,2): e(f"v_pk_add_f32 v[{16+i}:{17+i}], v[{16+i}:{17+i}], v[{40+i}:{41+i}]")
        e("s_waitcnt lgkmcnt(6)")
        for i in range(0,24,2): e(f"v_pk_add_f32 v[{16+i}:{17+i}], v[{16+i}:{17+i}], v[{64+i}:{65+i}]")
        e("s_waitcnt lgkmcnt(0)")
        for i in range(0,24,2): e(f"v_pk_add_f32 v[{16+i}:{17+i}], v[{16+i}:{17+i}], v[{88+i}:{89+i}]")
        e(f"""s_lshl_b32 s{sB}, s{sT}, 1
              s_mul_i32 s{sB}, s{sB}, 40
              s_mul_i32 s{sC}, s{sJ}, 5
              s_add_u32 s{sB}, s{sB}, s{sC}
              s_lshl_b32 s{sB}, s{sB}, 10
              s_add_u32 s{sB}, s{sB}, {OF}
              s_lshl_b32 s{sC}, s{sW}, 10
              s_add_u32 s{sC}, s{sC}, s{sB}
              s_add_u32 s{sD}, s{sB}, 4096
              v_and_b32 v10, 31, v{vL}
              v_lshlrev_b32 v10, 4, v10
              s_and_b32 s{sE}, s{sW}, 1
              s_lshl_b32 s{sE}, s{sE}, 9
              s_lshr_b32 s{sF}, s{sW}, 1
              s_lshl_b32 s{sF}, s{sF}, 3
              s_add_u32 s{sE}, s{sE}, s{sF}
              v_add_u32 v10, s{sE}, v10
              v_cmp_gt_u32 vcc, 32, v{vL}
              v_mov_b32 v11, {hex(OOB)}
              v_cndmask_b32 v10, v11, v10, vcc""")
        for tt in range(2):
            b=16+12*tt
            e(f"""v_mov_b32 v12, v{b+8}
                  v_mov_b32 v13, v{b+8}
                  v_permlane32_swap_b32 v12, v13
                  v_rcp_f32 v13, v13
                  v_mov_b32 v12, v13""")
            for i in range(0,12,2): e(f"v_pk_mul_f32 v[{b+i}:{b+i+1}], v[{b+i}:{b+i+1}], v[12:13]")
            for i in range(6): e(f"v_cvt_pk_bf16_f32 v{b+i}, v{b+2*i}, v{b+2*i+1}")
            e(f"""buffer_store_dwordx4 {vr(b,4)}, v9, {srd(SRD_WS)}, s{sC} offen sc1
                  buffer_store_dwordx2 {vr(b+4,2)}, v10, {srd(SRD_WS)}, s{sD} offen sc1""")
            if tt==0: e(f"""s_add_u32 s{sC}, s{sC}, {40*1024}
                            s_add_u32 s{sD}, s{sD}, {40*1024}""")
        e("s_waitcnt vmcnt(0)")
        self.lds_inc(C_OS,8,vCNT,rtn=True)
        L=a.newlabel('Lno')
        e(f"""s_cmp_lg_u32 s{sA}, 3
              s_cbranch_scc1 {L}""")
        e(f"""s_lshl_b32 s{sB}, s{sT}, 3
              s_add_u32 s{sB}, s{sB}, s{sJ}
              s_lshl_b32 s{sB}, s{sB}, 7
              s_add_u32 s{sB}, s{sB}, {OFLAG}""")
        self.flag_store(sB, 8)
        a.label(L)
        self.stamp(9)

    def role_f(self):
        e=self.e; a=self.a
        vL=6; vCNT=1
        vS1=7; vS2=14; vTR=15; vB0=12
        e(f"""; ---- role F ----
              s_sub_u32 s{sI}, s{sW}, 4
              s_lshl_b32 s{sA}, s{sJ}, 2
              s_mul_i32 s{sB}, s{sJ}, 3
              s_add_u32 s{sB}, s{sB}, 3
              s_cmp_ge_u32 s{sJ}, 3
              s_cselect_b32 s{sA}, s{sB}, s{sA}
              s_cselect_b32 s{sP}, 3, 4
              s_add_u32 s{sA}, s{sA}, s{sI}
              s_lshl_b32 s{sCF1}, s{sA}, 1
              s_add_u32 s{sCF2}, s{sCF1}, 1""")
        self.mk_srd(SRD_W2,P_WQ,819200)
        npf=0
        if self.o.get('pfQ2',0): npf=self.l2_prefetch_flat(SRD_W2, 819200, vL, 8, 127, sI, 4, ntk='ntQ')
        vWq=7
        e(f"""s_cmp_eq_u32 s{sI}, 3
              s_cbranch_scc1 L_f_w7_pre""")
        e(f"s_lshl_b32 s{sC}, s{sI}, 6")
        self.w192_voff(vWq, f"s{sC}", vL, False, 8, 9)
        e(f"""s_lshl_b32 s{sRING}, s{sI}, 10
              s_add_u32 s{sRING}, s{sRING}, {RINGQ}
              s_mov_b32 s{sOFF}, 0""")
        def qdma(slot_imm=None):
            for st in range(2):
                if slot_imm is not None: e(f"s_add_u32 m0, s{sRING}, {slot_imm+3072*st}")
                else:
                    e(f"s_add_u32 s{sA}, s{sRING}, s{sK}")
                    e(f"s_add_u32 m0, s{sA}, {3072*st}")
                e(f"""s_mov_b32 s{sB}, s{sOFF}
                      s_add_u32 s{sOFF}, s{sOFF}, 20480
                      buffer_load_dwordx4 v{vWq}, {srd(SRD_W2)}, s{sB} offen{self.NT('ntWA')} lds""")
        if self.o.get('qfillLN',1):
            self.layernorm([(lambda n=n: qdma(QCH*n)) for n in range(QN-1)], pre_barrier=f"s_waitcnt vmcnt({2*(QN-3)})", prog=npf)
        else:
            for n in range(QN-1): qdma(QCH*n)
            e(f"s_waitcnt vmcnt({2*(QN-1)+npf})")
            self.layernorm(pre_barrier=f"s_waitcnt vmcnt({2*(QN-3)})")
        e(f"""s_mov_b32 s{sK}, {QCH*(QN-1)}
              s_mov_b32 s{sLOOP}, 20""")
        a.label('L_f_qstage')
        qdma()
        e(f"""s_add_u32 s{sK}, s{sK}, {QCH}
              s_cmp_eq_u32 s{sK}, {QCH*QN}
              s_cselect_b32 s{sK}, 0, s{sK}
              s_waitcnt vmcnt({2*(QN-3)})
              s_barrier
              s_sub_u32 s{sLOOP}, s{sLOOP}, 1
              s_cmp_lg_u32 s{sLOOP}, 0
              s_cbranch_scc1 L_f_qstage
              s_waitcnt vmcnt(0)
              s_branch L_f_qdone""")
        a.label('L_f_w7_pre')
        self.mk_srd(SRD_S,P_W1,2211840)
        self.layernorm(prog=npf)
        e(f"s_mov_b32 s{sG}, 0\nv_mov_b32 v10, 0\ns_mov_b32 s{sH}, 0")
        def nonce_to_lds():
            e(f"""s_mov_b64 exec, 1
                  ds_write_b32 v{vCNT}, v9 offset:{C_NHI}
                  s_waitcnt lgkmcnt(0)
                  v_or_b32 v8, 1, v8
                  ds_write_b32 v{vCNT}, v8 offset:{C_NLO}
                  s_mov_b64 exec, -1""")
        for p in range(20):
            if p==0: e(f"global_load_dwordx2 v[8:9], v10, s[{P_DBG}:{P_DBG+1}] sc1")
            if p==5:
                Ln=a.newlabel('Lnn')
                e(f"""s_waitcnt vmcnt(0)
                      v_readfirstlane_b32 s{sH}, v8
                      s_cmp_eq_u32 s{sH}, 0
                      s_cbranch_scc1 {Ln}""")
                nonce_to_lds()
                a.label(Ln)
            if p==9:
                LP=a.newlabel('Lnp'); LD=a.newlabel('Lnd'); LE=a.newlabel('Lne')
                e(f"""s_cmp_lg_u32 s{sH}, 0
                      s_cbranch_scc1 {LE}
                      s_mov_b32 s{sSPIN}, {SPIN_MAX}""")
                a.label(LP)
                e(f"""global_load_dwordx2 v[8:9], v10, s[{P_DBG}:{P_DBG+1}] sc1
                      s_waitcnt vmcnt(0)
                      v_readfirstlane_b32 s{sA}, v8
                      s_cmp_lg_u32 s{sA}, 0
                      s_cbranch_scc1 {LD}
                      s_sleep 1
                      s_sub_u32 s{sSPIN}, s{sSPIN}, 1
                      s_cmp_lg_u32 s{sSPIN}, 0
                      s_cbranch_scc1 {LP}""")
                a.label(LD)
                nonce_to_lds()
                a.label(LE)
            if p>=6 and p%2==0 and (p-6)//2<self.o.get('pfF',0):
                Lp=a.newlabel('Lw7pf')
                e(f"s_cmp_lt_u32 s{sJ}, 6\ns_cbranch_scc1 {Lp}")
                self.l2_prefetch_flat(SRD_S, 2211840, vL, 11, 'a127', sG, 1, self.o.get('pfF0',0)+(p-6)//2, self.o.get('pfF0',0)+(p-6)//2+1, ntk='ntF')
                a.label(Lp)
            e("s_barrier")
        a.label('L_f_qdone')
        self.lds_inc(C_XA, 8, vCNT)
        e(f"""s_setprio 3
              s_mov_b32 s{SRD_S}, s{P_W1}
              s_mov_b32 s{SRD_S+1}, s{P_W1+1}
              s_mov_b32 s{SRD_S+2}, 2211840
              s_mov_b32 s{SRD_S+3}, 0x20000
              s_mov_b32 s{sSTEP}, 55296
              s_sub_u32 s{sOFF}, 0, s{sSTEP}
              s_mul_i32 s{sRING}, s{sI}, {RING_F_SZ}
              s_add_u32 s{sRING}, s{sRING}, {RING_F}
              s_lshl_b32 s{sD}, s{sCF1}, 6""")
        self.mk_srd(SRD_WO,P_WO,819200)
        e(f"""v_lshrrev_b32 v8, 3, v{vL}
              v_mul_u32_u24 v{vS1}, 3456, v8
              v_bfe_u32 v9, v{vL}, 4, 1
              v_lshlrev_b32 v9, 2, v9
              v_and_b32 v8, 7, v{vL}
              v_xor_b32 v8, v8, v9
              v_lshl_add_u32 v{vS1}, v8, 4, v{vS1}
              v_add_u32 v{vS1}, s{sD}, v{vS1}
              v_add_u32 v{vS2}, {8*3456}, v{vS1}
              v_lshrrev_b32 v{vTR}, 5, v{vL}
              v_lshlrev_b32 v{vTR}, 3, v{vTR}
              v_bfe_u32 v8, v{vL}, 2, 2
              v_add_u32 v{vTR}, v{vTR}, v8
              v_lshlrev_b32 v{vTR}, 7, v{vTR}
              v_bfe_u32 v8, v{vL}, 3, 1
              v_lshl_add_u32 v{vTR}, v8, 6, v{vTR}
              v_bfe_u32 v8, v{vL}, 4, 1
              v_lshl_add_u32 v{vTR}, v8, 5, v{vTR}
              v_and_b32 v8, 3, v{vL}
              v_lshl_add_u32 v{vTR}, v8, 3, v{vTR}
              v_add_u32 v{vTR}, s{sRING}, v{vTR}
              v_xor_b32 v13, 64, v{vTR}""")
        adv=f"s_add_u32 s{sOFF}, s{sOFF}, s{sSTEP}"
        self.mk_srd(SRD_W2,P_W2,2211840)
        self.get_nonce(8,vCNT)
        e(f"""s_cmp_ge_u32 s{sI}, s{sP}
              s_cbranch_scc1 L_f_ffn1_skip""")
        e(f"""v_and_b32 v8, 31, v{vL}
              v_mul_u32_u24 v{vB0}, {XNS}, v8
              v_lshrrev_b32 v8, 5, v{vL}
              v_lshl_add_u32 v{vB0}, v8, 4, v{vB0}""")
        e("; MARK_F_BEGIN")
        D=64
        self.lds_spin(C_XA,8,8,vCNT)
        if self.o.get('quiet',0)==3:
            Lq3=a.newlabel('Lq3')
            e(f"s_cmp_lt_u32 s{sJ}, 6\ns_cbranch_scc1 {Lq3}")
            self.lds_spin(C_KW,2,8,vCNT)
            a.label(Lq3)
        if self.o.get('quiet',0)==1: self.lds_spin(C_KV,1,8,vCNT)
        if self.o.get('quiet',0)==2: self.lds_spin(C_LS,4,8,vCNT)
        NS=self.o.get('ns1',5); U=NS if NS%2==0 else 2*NS
        vm=Cnt(a,'vmcnt',63); lg=Cnt(a,'lgkmcnt',15)
        for s in range(NS):
            self.dma(SRD_S, vS1, sOFF, sRING, 2048*s, adv)
            self.dma(SRD_S, vS2, sOFF, sRING, 2048*s+1024)
        for i in range(64): e(f"v_mov_b32 v{D+i}, 0")
        def regs(i): return 16+8*(i%2), 32+8*(i%2)
        def bread(i,off):
            A,B=regs(i)
            for tt in range(2): e(f"ds_read_b128 {vr(B+4*tt,4)}, v{vB0} offset:{tt*32*XNS+off}")
        def aread(i,st):
            A,B=regs(i); slot=2048*(i%NS); va=(vTR,13)[st]
            e(f"ds_read_b64_tr_b16 v[{A+4*st}:{A+4*st+1}], v{va} offset:{slot}")
            e(f"ds_read_b64_tr_b16 v[{A+4*st+2}:{A+4*st+3}], v{va} offset:{slot+512}")
        e(f"s_waitcnt vmcnt({2*NS-2})")
        aread(0,0); aread(0,1); bread(0,0)
        tog=self.o.get('toggle1',0)
        e(f"s_setprio {self.o.get('prioFl',3) if tog else self.o.get('prioF1',0)}")
        def step(i, s_abs, rolled):
            A,B=regs(i)
            mf=[]
            for st in range(2):
                for tt in range(2):
                    r=vr(D+32*st+16*tt,16)
                    mf.append(f"v_mfma_f32_32x32x16_bf16 {r}, {vr(A+4*st,4)}, {vr(B+4*tt,4)}, {r}")
            more = rolled or s_abs+1<40
            fl=[]
            if more:
                fl.append(lambda: (e(f"s_waitcnt vmcnt({2*NS-4})"), aread(i+1,0), aread(i+1,1)))
                fl.append(lambda: bread(i+1,32*(i+1)))
            fl.append(lambda: self.dma(SRD_S, vS1, sOFF, sRING, 2048*(i%NS), adv))
            fl.append(lambda: self.dma(SRD_S, vS2, sOFF, sRING, 2048*(i%NS)+1024))
            e("s_waitcnt lgkmcnt(0)")
            self.weave(mf,fl,tog)
        nit=40//U
        if nit:
            e(f"s_mov_b32 s{sLOOP}, {nit}")
            a.label('L_ffn1')
            for i in range(U): step(i,None,True)
            e(f"""v_add_u32 v{vB0}, {32*U}, v{vB0}
                  s_sub_u32 s{sLOOP}, s{sLOOP}, 1
                  s_cmp_lg_u32 s{sLOOP}, 0
                  s_cbranch_scc1 L_ffn1""")
        for r in range(40-nit*U): step(r, nit*U+r, False)
        e(f"""s_setprio {self.o.get('prioFv',3)}
              s_waitcnt lgkmcnt(0)""")
        e("s_waitcnt vmcnt(0)")
        self.stamp(3)
        self.lds_inc(C_X, 8, vCNT)
        e(f"v_lshlrev_b32 v12, 4, v{vL}")
        for st in range(2):
            for tt in range(2):
                cf=(sCF1,sCF2)[st]
                e(f"""s_lshl_b32 s{sB}, s{sT}, 1
                      s_add_u32 s{sB}, s{sB}, {tt}
                      s_mul_i32 s{sB}, s{sB}, 108
                      s_lshl_b32 s{sC}, s{cf}, 1
                      s_add_u32 s{sB}, s{sB}, s{sC}
                      s_lshl_b32 s{sB}, s{sB}, 10
                      s_add_u32 s{sB}, s{sB}, {HF}""")
                self.silu_store(D+32*st+16*tt, 16, 12, sB)
        self.publish_h(sP, 8, vCNT)
        e("s_branch L_f_ffn1_done")
        a.label('L_f_ffn1_skip')
        self.lds_inc(C_X, 8, vCNT)
        e(f"s_mov_b32 s{sG}, 0")
        if self.o.get('pfW2',0):
            if self.o.get('quiet',0)==1: self.lds_spin(C_KV,1,8,vCNT)
            if self.o.get('quiet',0)==2: self.lds_spin(C_LS,4,8,vCNT)
            e(f"""s_and_b32 s{sH}, s{sT}, 3
                  s_mul_i32 s{sH}, s{sH}, 5
                  s_add_u32 s{sH}, s{sH}, s{sJ}
                  s_sub_u32 s{sH}, s{sH}, 3""")
            pc=self.o.get('pace',2)
            if self.o.get('pfF3',1):
                r0=((self.o.get('pfF',0)+self.o.get('pfF0',0))*2048)//1280
                self.l2_prefetch_flat(SRD_S, 2211840, vL, 8, 'a127', sG, 1, r0, None, ntk='ntF', midx=sH, nwg=20, pace=pc)
            self.l2_prefetch_flat(SRD_W2, 2211840, vL, 8, 'a127', sG, 1, midx=sH, nwg=20, pace=pc)
        self.stamp(3)
        a.label('L_f_ffn1_done')
        self.stamp(4)
        if self.stop=='s2': return
        self.ffn2()

    def ffn2(self):
        e=self.e; a=self.a
        vL=6; vCNT=1
        vW=[7,14,15]; vTR=13; vB=12; vW4=[2,3,4]
        ND=F2ND
        e("; ---- FFN2 ----")
        for i in range(3): self.w192_voff(vW[i], i, vL, False, 8, 9)
        for i in range(3): self.w192_voff(vW4[i], i, vL, True, 8, 9)
        e(f"""s_mul_i32 s{sRING}, s{sI}, {F2RING_SZ}
              s_add_u32 s{sRING}, s{sRING}, {XN}
              s_mul_i32 s{sOFF}, s{sI}, {27*20480}
              s_sub_u32 s{sOFF}, s{sOFF}, 20480
              v_lshlrev_b32 v{vB}, 4, v{vL}""")
        self.tr192_addr(vTR, vL, sRING, 8)
        self.lds_spin(C_X,8,8,vCNT)
        adv=f"s_add_u32 s{sOFF}, s{sOFF}, 20480"
        vm=Cnt(a,'vmcnt',63); lg=Cnt(a,'lgkmcnt',15)
        def dmas(s):
            for c in range(3):
                self.dma(SRD_W2, vW[c], sOFF, sRING, (s%ND)*3072+1024*c, adv if c==0 else None); vm.issue(('d',s))
        for s in range(ND): dmas(s)
        L=a.newlabel('Lhw')
        e(f"""s_cmp_lg_u32 s{sW}, 4
              s_cbranch_scc1 {L}""")
        e(f"""v_lshlrev_b32 v5, 7, v{vL}
              s_lshl_b32 s{sB}, s{sT}, 10
              s_add_u32 s{sB}, s{sB}, {HFLAG}""")
        self.flag_poll(5, 8, 8, sB)
        self.lds_set(C_HR, 1, 8, vCNT)
        a.label(L)
        self.lds_spin(C_HR,1,8,vCNT)
        self.stamp(5)
        e(f"""s_lshl_b32 s{sK}, s{sT}, 1
              s_mul_i32 s{sK}, s{sK}, 108
              s_mul_i32 s{sA}, s{sI}, 27
              s_add_u32 s{sK}, s{sK}, s{sA}
              s_lshl_b32 s{sK}, s{sK}, 10
              s_add_u32 s{sK}, s{sK}, {HF}
              s_add_u32 s{sV}, s{sK}, {108*1024}""")
        BB=64
        def bload(s):
            b=BB+8*(s%ND)
            e(f"""buffer_load_dwordx4 {vr(b,4)}, v{vB}, {srd(SRD_WS)}, s{sK} offen sc1
                  buffer_load_dwordx4 {vr(b+4,4)}, v{vB}, {srd(SRD_WS)}, s{sV} offen sc1
                  s_add_u32 s{sK}, s{sK}, 1024
                  s_add_u32 s{sV}, s{sV}, 1024""")
            vm.issue(('b',s)); vm.issue(('b',s))
        for s in range(ND): bload(s)
        def reads(s):
            A=16+12*(s&1); slot=(s%ND)*3072
            for c in range(3):
                e(f"ds_read_b64_tr_b16 v[{A+4*c}:{A+4*c+1}], v{vTR} offset:{slot+64*c}"); lg.issue(('r',s))
                e(f"ds_read_b64_tr_b16 v[{A+4*c+2}:{A+4*c+3}], v{vTR} offset:{slot+64*c+1536}"); lg.issue(('r',s))
        def rd(s,c):
            A=16+12*(s&1); slot=(s%ND)*3072
            e(f"ds_read_b64_tr_b16 v[{A+4*c}:{A+4*c+1}], v{vTR} offset:{slot+64*c}"); lg.issue(('r',s))
            e(f"ds_read_b64_tr_b16 v[{A+4*c+2}:{A+4*c+3}], v{vTR} offset:{slot+64*c+1536}"); lg.issue(('r',s))
        def dma1(s,c):
            if s<27:
                self.dma(SRD_W2, vW[c], sOFF, sRING, (s%ND)*3072+1024*c, adv if c==0 else None); vm.issue(('d',s))
            else:
                jj,sp=divmod(s-27,5)
                r0=jj*80+(20*sp if sp<4 else 0)
                mid=f"s_add_u32 s{sOFF}, s{sOFF2}, {r0*1280}" if c==0 else None
                self.dma(SRD_WO, (vW4 if sp==4 else vW)[c], sOFF, sRING, (s%ND)*3072+1024*c, mid); vm.issue(('d',s))
        e(f"s_mul_i32 s{sOFF2}, s{sI}, {160*1280}")
        vm.wait(('d',0)); reads(0)
        NST=27
        e(f"s_setprio {self.o.get('prioFl',3) if self.o.get('toggle',0) else self.o.get('prioF2',0)}")
        for s in range(NST):
            lg.wait(('r',s)); vm.wait(('b',s))
            A=16+12*(s&1); B=BB+8*(s%ND)
            mf=[]
            for c in range(3):
                for tt in range(2):
                    r=ar(16*(2*c+tt),16); cc=r if s>0 else '0'
                    mf.append(f"v_mfma_f32_32x32x16_bf16 {r}, {vr(A+4*c,4)}, {vr(B+4*tt,4)}, {cc}")
            fl=[]
            if s+1<NST:
                fl.append(lambda s=s: (vm.wait(('d',s+1)), rd(s+1,0)))
                fl.append(lambda s=s: rd(s+1,1))
                fl.append(lambda s=s: rd(s+1,2))
            for c in range(3): fl.append(lambda s=s,c=c: dma1(s+ND,c))
            self.weave(mf,fl,self.o.get('toggle',0))
            if s+ND<NST: bload(s+ND)
        e(f"s_setprio {self.o.get('prioFv',3)}")
        e("; MARK_F_END")
        self.stamp(6)
        if self.stop=='ffn2': return
        def frag(k,c):
            idx=3*k+c
            if idx<22: return ('v',16+4*idx)
            return ('a',96+4*(idx-22))
        e("s_waitcnt lgkmcnt(0)")
        for k in range(10):
            s=27+k
            vm.wait(('d',s))
            slot=(s%ND)*3072
            for c in range(3):
                t,r=frag(k,c)
                e(f"ds_read_b64_tr_b16 {t}[{r}:{r+1}], v{vTR} offset:{slot+64*c}"); lg.issue(('w',k))
                e(f"ds_read_b64_tr_b16 {t}[{r+2}:{r+3}], v{vTR} offset:{slot+64*c+1536}"); lg.issue(('w',k))
            if k+ND<10:
                lg.wait(('w',k))
                for c in range(3): dma1(s+ND,c)
            else: lg.wait(('w',k-1))
        e("s_waitcnt lgkmcnt(0)")
        self.lds_inc(C_F2, 8, vCNT)
        self.outproj(frag)

    def outproj(self, frag):
        e=self.e; a=self.a
        vL=6; vCNT=1; vB=12
        self.stamp(7)
        e(f"""v_lshlrev_b32 v5, 7, v{vL}
              s_lshl_b32 s{sB}, s{sT}, 3
              s_lshl_b32 s{sA}, s{sI}, 1
              s_add_u32 s{sB}, s{sB}, s{sA}
              s_lshl_b32 s{sB}, s{sB}, 7
              s_add_u32 s{sB}, s{sB}, {OFLAG}""")
        self.flag_poll(5, 8, 2, sB)
        self.stamp(8)
        e(f"""s_lshl_b32 s{sK}, s{sT}, 1
              s_mul_i32 s{sK}, s{sK}, 40
              s_mul_i32 s{sA}, s{sI}, 10
              s_add_u32 s{sK}, s{sK}, s{sA}
              s_lshl_b32 s{sK}, s{sK}, 10
              s_add_u32 s{sK}, s{sK}, {OF}
              s_add_u32 s{sV}, s{sK}, {40*1024}""")
        vm=Cnt(a,'vmcnt',63)
        BB=104; NB=3
        def bload(k):
            b=BB+8*(k%NB)
            e(f"""buffer_load_dwordx4 {vr(b,4)}, v{vB}, {srd(SRD_WS)}, s{sK} offen sc1
                  buffer_load_dwordx4 {vr(b+4,4)}, v{vB}, {srd(SRD_WS)}, s{sV} offen sc1
                  s_add_u32 s{sK}, s{sK}, 1024
                  s_add_u32 s{sV}, s{sV}, 1024""")
            vm.issue(('b',k)); vm.issue(('b',k))
        for k in range(NB): bload(k)
        self.lds_spin(C_F2, 4, 8, vCNT)
        self.lds_spin(C_OS, 4, 8, vCNT)
        for k in range(10):
            vm.wait(('b',k))
            B=BB+8*(k%NB)
            for c in range(3):
                t,r=frag(k,c)
                for tt in range(2):
                    acc=ar(16*(2*c+tt),16)
                    e(f"v_mfma_f32_32x32x16_bf16 {acc}, {t}[{r}:{r+3}], {vr(B+4*tt,4)}, {acc}")
            if k+NB<10: bload(k+NB)
        e(f"""v_and_b32 v8, 31, v{vL}
              v_mul_u32_u24 v9, {PSTR}, v8
              v_lshrrev_b32 v8, 5, v{vL}
              v_lshl_add_u32 v9, v8, 4, v9
              s_mul_i32 s{sA}, s{sI}, {PSZ}
              v_add_u32 v9, s{sA}, v9""")
        if RED: e(f"v_add_u32 v9, {RED}, v9")
        for c in range(3):
            for tt in range(2):
                for rq in range(4 if c<2 else 2):
                    e(f"ds_write_b128 v9, {ar(16*(2*c+tt)+4*rq,4)} offset:{tt*32*PSTR+(8*c+2*rq)*16}")
        e("s_waitcnt lgkmcnt(0)")
        self.stamp(9)

    def final(self):
        e=self.e; a=self.a
        self.mk_srd(SRD_OUT,P_OUT,2621440)
        e("; ---- final ----")
        IT=((0,8,9,10,11,12,16),(2,3,4,5,7,48,52))
        e(f"""v_and_b32 v6, 63, v0
              s_lshl_b32 s{sA}, s{sW}, 4
              s_add_u32 s{sA}, s{sA}, 512
              v_add_u32 v2, s{sA}, v6
              v_min_u32 v2, 639, v2
              s_lshl_b32 s{sC}, s{sT}, 6
              s_mul_i32 s{sD}, s{sJ}, 160""")
        for n,(vit,vt,vo,vg,vl,vx,vp) in enumerate(IT):
            e(f"""v_mul_u32_u24 v{vt}, 6554, v{vit}
                  v_lshrrev_b32 v{vt}, 16, v{vt}
                  v_mul_u32_u24 v{vo}, 10, v{vt}
                  v_sub_u32 v{vo}, v{vit}, v{vo}
                  v_add_u32 v{vg}, s{sC}, v{vt}
                  v_mul_u32_u24 v{vg}, 1280, v{vg}
                  v_lshl_add_u32 v{vg}, v{vo}, 4, v{vg}
                  v_add_u32 v{vg}, s{sD}, v{vg}""")
            if n==1:
                e(f"""v_cmp_gt_u32 vcc, 16, v6
                      v_mov_b32 v84, {hex(OOB)}
                      v_cndmask_b32 v{vg}, v84, v{vg}, vcc""")
            e(f"""buffer_load_dwordx4 {vr(vx,4)}, v{vg}, {srd(SRD_X)}, 0 offen
                  v_mul_u32_u24 v{vl}, {PSTR}, v{vt}
                  v_lshl_add_u32 v{vl}, v{vo}, 5, v{vl}""")
            if RED: e(f"v_add_u32 v{vl}, {RED}, v{vl}")
        e("s_barrier")
        if not self.o.get('kv2'): self.stamp(10)
        def reads(n,fs):
            vit,vt,vo,vg,vl,vx,vp=IT[n]
            for f in fs:
                e(f"ds_read_b128 {vr(vp+8*f,4)}, v{vl} offset:{f*PSZ}\nds_read_b128 {vr(vp+4+8*f,4)}, v{vl} offset:{f*PSZ+16}")
        def post(n):
            vit,vt,vo,vg,vl,vx,vp=IT[n]
            for i in range(0,8,2):
                e(f"""v_pk_add_f32 v[{vp+i}:{vp+1+i}], v[{vp+i}:{vp+1+i}], v[{vp+8+i}:{vp+9+i}]
                      v_pk_add_f32 v[{vp+16+i}:{vp+17+i}], v[{vp+16+i}:{vp+17+i}], v[{vp+24+i}:{vp+25+i}]
                      v_pk_add_f32 v[{vp+i}:{vp+1+i}], v[{vp+i}:{vp+1+i}], v[{vp+16+i}:{vp+17+i}]""")
            for i in range(4):
                e(f"""v_lshlrev_b32 v84, 16, v{vx+i}
                      v_and_b32 v85, 0xffff0000, v{vx+i}
                      v_fma_f32 v84, v{vp+2*i}, s{sB}, v84
                      v_fma_f32 v85, v{vp+1+2*i}, s{sB}, v85
                      v_cvt_pk_bf16_f32 v{vx+i}, v84, v85""")
            e(f"buffer_store_dwordx4 {vr(vx,4)}, v{vg}, {srd(SRD_OUT)}, 0 offen")
        e(f"s_mov_b32 s{sB}, {hex(f2u(LN2))}")
        reads(0,range(4)); reads(1,range(3))
        e("s_waitcnt vmcnt(0) lgkmcnt(6)")
        reads(1,[3])
        post(0)
        e("s_waitcnt lgkmcnt(0)")
        post(1)
        a.label('L_fin')
        if self.o.get('prof'):
            e("s_waitcnt vmcnt(0)")
            self.stamp(11)
            self.dump_stamps()

    def build(self):
        a=self.a; e=self.e
        self.prologue()
        e(f"""s_cmp_ge_u32 s{sW}, 4
              s_cbranch_scc1 L_role_f""")
        self.role_a()
        if self.stop=='s2':
            self.dump_q()
        else:
            (self.attention if self.o.get('attn',0) else self.attention_reg)()
            self.o_reduce()
        e("s_branch L_join")
        a.label('L_role_f')
        self.role_f()
        a.label('L_join')
        if self.stop is None:
            self.final()
        a.label('L_exit')
        e("s_endpgm")
        L=a.L
        if self.o.get('noFmfma') or self.o.get('noFmem') or self.o.get('noFlds') or self.o.get('noFprio'):
            out=[]; inside=False
            for l in L:
                if 'MARK_F_BEGIN' in l: inside=True
                if 'MARK_F_END' in l: inside=False
                t=l.strip()
                if inside and self.o.get('noFmfma') and t.startswith('v_mfma'): continue
                nm=self.o.get('noFmem',0)
                if inside and nm in (1,2) and t.startswith('buffer_load_dwordx4') and t.endswith(' lds'): continue
                if inside and nm in (1,3) and t.startswith('buffer_load_dwordx4') and (('s[48:51], s76' in t) or ('s[48:51], s77' in t)): continue
                if inside and self.o.get('noFlds') and t.startswith('ds_read_b64_tr'): continue
                if inside and self.o.get('noFprio') and t.startswith('s_setprio'): continue
                out.append(l)
            L=out
        lines,n=fix_hazards(L)
        return lines,n
    def dump_q(self):
        e=self.e
        self.lds_spin(C_Q,3,8,1)
        e(f"""v_lshlrev_b32 v9, 4, v6
              s_lshl_b32 s{sA}, s{sW}, 12
              v_add_u32 v9, s{sA}, v9
              v_add_u32 v10, {QF}, v9
              s_lshl_b32 s{sB}, s{sT}, 3
              s_add_u32 s{sB}, s{sB}, s{sJ}
              s_lshl_b32 s{sB}, s{sB}, 14
              s_add_u32 s{sB}, s{sB}, 0x1000000""")
        for i in range(4):
            e(f"""ds_read_b128 v[16:19], v10 offset:{1024*i}
                  s_waitcnt lgkmcnt(0)
                  buffer_store_dwordx4 v[16:19], v9, {srd(SRD_WS)}, s{sB} offen offset:{1024*i}
                  s_waitcnt vmcnt(0)""")

HEADER='''; Fused LayerNorm + MQA attention + SiLU FFN + residual, one persistent launch (256 workgroups, one per CU).
; Kernarg layout (88 bytes, ptrs only): A_x, A_wq, A_wk, A_wv, A_wo, B_x, B_w1, B_w2, d_out, d_debug, d_ws
; @launch grid=(256,1,1) block=(512,1,1) lds=%d
.amdgcn_target "amdgcn-amd-amdhsa--gfx950"
.text
.globl %s
.p2align 8
.type %s,@function
%s:
''' % (LDS_TOTAL,KNAME,KNAME,KNAME)
FOOTER='''
.section .rodata,"a"
.p2align 6
.amdhsa_kernel %s
  .amdhsa_next_free_vgpr 256
  .amdhsa_next_free_sgpr 102
  .amdhsa_accum_offset 128
  .amdhsa_group_segment_fixed_size 0
  .amdhsa_kernarg_size 88
  .amdhsa_user_sgpr_count 2
  .amdhsa_user_sgpr_kernarg_segment_ptr 1
  .amdhsa_system_sgpr_workgroup_id_x 1
.end_amdhsa_kernel
''' % KNAME

def generate(path, stop=None, opts=None):
    global WS_SIZE
    if stop=='s2': WS_SIZE=0x2000000
    g=G(stop,opts)
    lines,n=g.build()
    open(path,'w').write(HEADER+"\n".join(lines)+FOOTER)
    print("generated",path,len(lines),"lines; nops inserted:",n)

if __name__=="__main__":
    stop=None; path="parallel_sum__grouped_kv_mqa__dense_activation_silu__prompt.s"
    opts={}
    for x in sys.argv[1:]:
        if x.startswith("stop="): stop=x[5:]
        elif x.startswith("out="): path=x[4:]
        else:
            k,v=x.split("="); opts[k]=float(v) if '.' in v else int(v)
    generate(path,stop,opts)
```
